```python
import torch

def _softmax(x, axis=-1):
    return torch.softmax(x, dim=axis)
def _gelu(x):
    return torch.nn.functional.gelu(x, approximate="tanh")
def _silu(x):
    return torch.nn.functional.silu(x)
def _sigmoid(x):
    return torch.sigmoid(x)
def _layernorm(x, axis=-1, eps=1e-5):
    m = x.mean(dim=axis, keepdim=True)
    v = x.var(dim=axis, keepdim=True, unbiased=False)
    return (x - m) / torch.sqrt(v + eps)
def _scatter_add(tgt, idx, src, axis=0):
    return tgt.clone().index_add_(axis, idx, src)
def _segment_sum(src, seg, n):
    out = torch.zeros((n,) + src.shape[1:], dtype=src.dtype)
    return out.index_add_(0, seg, src)
def _pad(x, pw):
    flat = tuple(v for pair in reversed(pw) for v in pair)
    return torch.nn.functional.pad(x, flat)

kernel_name = 'gated_mix__softmax_full_mha__mha_block__prompt'

def setup_inputs():

    _w = (lambda a: (lambda t: t.to(torch.bfloat16) if t.is_floating_point() else t)(torch.as_tensor(a)))
    def _A_setup():
        B, S, D = 1, 2048, 448
        return {
            "x": _w((lambda *s: torch.randn(*s, dtype=torch.bfloat16) * 0.05)(B, S, D)),
            "wqkv": _w((lambda *s: torch.randn(*s, dtype=torch.bfloat16) * 0.8)(D, 3 * D)),
            "wo": _w((lambda *s: torch.randn(*s, dtype=torch.bfloat16) * 0.05)(D, D)),
        }
    _A_in = _A_setup()

    def _B_setup():
        B, S, D, H = 1, 2048, 448, 16
        return {
            "x": _w((lambda *s: torch.randn(*s, dtype=torch.bfloat16) * 0.05)(B, S, D)),
            "wqkv": _w((lambda *s: torch.randn(*s, dtype=torch.bfloat16) * 0.8)(D, 3 * D)),
            "wo": _w((lambda *s: torch.randn(*s, dtype=torch.bfloat16) * 0.05)(D, D)),
        }
    _B_in = _B_setup()

    return {
        "A_x": _A_in["x"],
        "A_wqkv": _A_in["wqkv"],
        "A_wo": _A_in["wo"],
        "B_x": _B_in["x"],
        "B_wqkv": _B_in["wqkv"],
        "B_wo": _B_in["wo"],
        "gate_w": _w((lambda *s: torch.randn(*s, dtype=torch.bfloat16) * 0.05)(448) * 16.0),
    }

def reference(A_x, A_wqkv, A_wo, B_x, B_wqkv, B_wo, gate_w):
    def _A_ref(x, wqkv, wo):
        B, S, D = x.shape
        H = 16; Dh = D // H
        qkv = (lambda x, *d: x.permute(*d))((x @ wqkv).reshape(B, S, 3, H, Dh), 2, 0, 3, 1, 4)
        q, k, v = qkv[0], qkv[1], qkv[2]
        scale = Dh ** -0.5
        scores = torch.einsum("bhqd,bhkd->bhqk", q, k) * scale
        p = _softmax(scores, axis=-1)
        o = torch.einsum("bhqk,bhkd->bhqd", p, v)
        return (lambda x, *d: x.permute(*d))(o, 0, 2, 1, 3).reshape(B, S, D) @ wo

    def _B_ref(x, wqkv, wo):
        B, S, D = x.shape
        H = 16
        Dh = D // H
        qkv = (lambda x, *d: x.permute(*d))((x @ wqkv).reshape(B, S, 3, H, Dh), 2, 0, 3, 1, 4)
        q, k, v = qkv[0], qkv[1], qkv[2]
        scores = torch.einsum("bhqd,bhkd->bhqk", q, k) * (Dh ** -0.5)
        p = _softmax(scores, axis=-1)
        o = torch.einsum("bhqk,bhkd->bhqd", p, v)
        return (lambda x, *d: x.permute(*d))(o, 0, 2, 1, 3).reshape(B, S, D) @ wo

    x = A_x
    g = _sigmoid((x * gate_w).sum(-1, keepdims=True))
    a = _A_ref(x, A_wqkv, A_wo)
    b = _B_ref(x, B_wqkv, B_wo)
    return g * a + (1 - g) * b
```

```python
import sys, struct, math

NAME = "gated_mix__softmax_full_mha__mha_block__prompt"
TIMING = False

WS_Q = 0
WS_KV = 4 << 20
WS_G = 12 << 20
WS_O = 16 << 20
WS_WO = 20 << 20
WS_TS = 64 << 20
WS_USED = 24 << 20

QSCALE = (28.0 ** -0.5) * math.log2(math.e)


def f32(x):
    return "0x%08x" % struct.unpack("<I", struct.pack("<f", x))[0]


class Asm:
    def __init__(self):
        self.lines = []
        self.nlab = 0

    def __call__(self, s):
        self.lines.append("    " + s)

    def raw(self, s):
        self.lines.append(s)

    def label(self, s):
        self.lines.append(s + ":")

    def newlabel(self, p):
        self.nlab += 1
        return "L%s_%d" % (p, self.nlab)

    def c(self, s):
        self.lines.append("    ; " + s)

    def text(self):
        return "\n".join(self.lines) + "\n"


def vr(a, n):
    return "v[%d:%d]" % (a, a + n - 1) if n > 1 else "v%d" % a


def ar(a, n):
    return "a[%d:%d]" % (a, a + n - 1) if n > 1 else "a%d" % a


def sr(a, n):
    return "s[%d:%d]" % (a, a + n - 1) if n > 1 else "s%d" % a


def kernel_begin(A, name):
    A.raw(".globl %s" % name)
    A.raw(".p2align 8")
    A.raw(".type %s,@function" % name)
    A.label(name)


def descriptor(name, nvgpr, accum, nsgpr=96):
    return "\n".join([
        ".p2align 6",
        ".amdhsa_kernel %s" % name,
        "  .amdhsa_next_free_vgpr %d" % nvgpr,
        "  .amdhsa_next_free_sgpr %d" % nsgpr,
        "  .amdhsa_accum_offset %d" % accum,
        "  .amdhsa_group_segment_fixed_size 0",
        "  .amdhsa_kernarg_size 80",
        "  .amdhsa_user_sgpr_count 2",
        "  .amdhsa_user_sgpr_kernarg_segment_ptr 1",
        "  .amdhsa_system_sgpr_workgroup_id_x 1",
        ".end_amdhsa_kernel",
    ])


def ts_begin(A):
    if TIMING:
        A("s_memrealtime s[88:89]")


def ts_end(A, kidx, vt0, wave_sgpr):
    if not TIMING:
        return
    A("s_waitcnt vmcnt(0) lgkmcnt(0)")
    A("s_memrealtime s[90:91]")
    A("s_load_dwordx2 s[84:85], s[0:1], 72")
    A("s_waitcnt lgkmcnt(0)")
    A("s_mov_b32 s86, 0x8000000")
    A("s_mov_b32 s87, 0x00020000")
    A("s_lshl_b32 s92, s2, 3")
    A("s_add_u32 s92, s92, s%d" % wave_sgpr)
    A("s_lshl_b32 s92, s92, 3")
    A("s_add_u32 s92, s92, %d" % (WS_TS + kidx * 65536))
    A("v_mov_b32 v%d, s88" % vt0)
    A("v_mov_b32 v%d, s90" % (vt0 + 1))
    A("v_mov_b32 v%d, 0" % (vt0 + 2))
    A("s_mov_b64 exec, 1")
    A("buffer_store_dwordx2 %s, v%d, s[84:87], s92 offen" % (vr(vt0, 2), vt0 + 2))


K1_SLOT = 37888
K1_XB = 16384


def gen_k1(A):
    name = "qkv_kernel"
    kernel_begin(A, name)
    Lend = "Lk1_end"
    Lload = "Lk1_loader"
    ts_begin(A)
    A("s_cmp_ge_u32 s2, 256")
    A("s_cbranch_scc1 %s" % Lend)
    A("s_load_dwordx4 s[20:23], s[0:1], 0")
    A("s_load_dwordx2 s[24:25], s[0:1], 16")
    A("s_load_dwordx4 s[28:31], s[0:1], 32")
    A("s_load_dwordx2 s[16:17], s[0:1], 48")
    A("s_load_dwordx2 s[12:13], s[0:1], 72")
    A("v_lshrrev_b32 v1, 6, v0")
    A("v_and_b32 v2, 63, v0")
    A("s_and_b32 s33, s2, 7")
    A("s_lshr_b32 s34, s2, 3")
    A("v_readfirstlane_b32 s32, v1")
    A("s_and_b32 s35, s33, 1")
    A("s_lshl_b32 s35, s35, 3")
    A("s_and_b32 s36, s34, 7")
    A("s_add_u32 s35, s35, s36")
    A("s_lshr_b32 s36, s33, 1")
    A("s_lshl_b32 s36, s36, 2")
    A("s_lshr_b32 s37, s34, 3")
    A("s_add_u32 s36, s36, s37")
    A("s_mov_b32 s14, %d" % WS_USED)
    A("s_mov_b32 s15, 0x00020000")
    A("s_cmp_ge_u32 s32, 4")
    A("s_cbranch_scc1 %s" % Lload)

    XA, XB, WA, WB = 4, 8, 12, 13
    FR = [16, 36]
    ACC = 64
    VC = 14
    VST = 15
    A.c("compute wave: tw=w&1, hw=w>>1")
    A("s_and_b32 s38, s32, 1")
    A("s_lshr_b32 s39, s32, 1")
    A("v_and_b32 v3, 31, v2")
    A("v_lshrrev_b32 v1, 5, v2")
    A("v_bfe_u32 v56, v2, 1, 3")
    A("v_xor_b32 v56, v56, v1")
    A("v_lshlrev_b32 v56, 4, v56")
    A("v_lshl_add_u32 v56, v3, 7, v56")
    A("s_lshl_b32 s40, s38, 13")
    A("v_add_u32 v%d, s40, v56" % XA)
    for ks in range(1, 4):
        A("v_xor_b32 v%d, %d, v%d" % (XA + ks, ks * 32, XA))
    for ks in range(4):
        A("v_add_u32 v%d, %d, v%d" % (XB + ks, 2 * K1_SLOT, XA + ks))
    A("v_bfe_u32 v56, v2, 2, 2")
    A("v_lshlrev_b32 v56, 1, v56")
    A("v_add_u32 v56, v56, v1")
    A("v_mul_u32_u24 v56, 672, v56")
    A("v_bfe_u32 v57, v2, 4, 1")
    A("v_lshl_add_u32 v56, v57, 5, v56")
    A("v_and_b32 v57, 3, v2")
    A("v_lshl_add_u32 v56, v57, 3, v56")
    A("s_mul_i32 s40, s39, 56")
    A("s_add_u32 s40, s40, %d" % K1_XB)
    A("v_add_u32 v%d, s40, v56" % WA)
    A("v_add_u32 v%d, %d, v%d" % (WB, 2 * K1_SLOT, WA))
    A("v_lshlrev_b32 v%d, 4, v2" % VST)
    A("v_cmp_gt_u32 s[42:43], 32, v2")
    A("v_cmp_gt_u32 s[44:45], 28, v3")
    A("v_cmp_eq_u32 vcc, 28, v3")
    A("v_mov_b32 v56, 0x3f803f80")
    A("s_nop 1")
    A("v_cndmask_b32 v%d, 0, v56, vcc" % VC)
    A("s_lshl_b32 s46, s36, 1")
    A("s_add_u32 s46, s46, s39")
    A("s_lshl_b32 s47, s35, 2")
    A("s_lshl_b32 s48, s38, 1")
    A("s_add_u32 s47, s47, s48")
    A("s_lshl_b32 s48, s46, 17")
    A("s_lshl_b32 s49, s47, 11")
    A("s_add_u32 s48, s48, s49")
    A("s_lshl_b32 s49, s48, 1")
    A("s_add_u32 s49, s49, %d" % WS_KV)
    A("s_add_u32 s50, s49, 4096")
    A("s_mov_b32 s51, %s" % f32(QSCALE))

    def reads(step):
        c, ks = divmod(step, 4)
        slot = c & 3
        fb = FR[step & 1]
        xr = (XA if slot < 2 else XB) + ks
        wr = WA if slot < 2 else WB
        so = (slot & 1) * K1_SLOT
        out = []
        out.append("ds_read_b128 %s, v%d offset:%d" % (vr(fb, 4), xr, so))
        for t in range(2):
            out.append("ds_read_b64_tr_b16 %s, v%d offset:%d" % (vr(fb + 8 + 2 * t, 2), wr, so + (16 * ks + t) * 336))
        out.append("ds_read_b128 %s, v%d offset:%d" % (vr(fb + 4, 4), xr, so + 4096))
        for sec in (1, 2):
            for t in range(2):
                out.append("ds_read_b64_tr_b16 %s, v%d offset:%d" % (
                    vr(fb + 8 + 4 * sec + 2 * t, 2), wr, so + (16 * ks + t) * 336 + sec * 112))
        return out

    def mfmas(step):
        fb = FR[step & 1]
        out = []
        for sec in range(3):
            for tt in range(2):
                d = vr(ACC + 16 * (sec * 2 + tt), 16)
                x = vr(fb + 4 * tt, 4)
                w = vr(fb + 8 + 4 * sec, 4)
                c = "0" if step == 0 else d
                if sec < 2:
                    out.append("v_mfma_f32_32x32x16_bf16 %s, %s, %s, %s" % (d, w, x, c))
                else:
                    out.append("v_mfma_f32_32x32x16_bf16 %s, %s, %s, %s" % (d, x, w, c))
        return out

    A("s_barrier")
    for r in reads(0):
        A(r)
    for step in range(28):
        m = mfmas(step)
        A("s_waitcnt lgkmcnt(0)")
        A(m[0])
        if step + 1 < 28:
            if (step + 1) % 4 == 0:
                A("s_barrier")
            rd = reads(step + 1)
            A(rd[0]); A(rd[1]); A(rd[2])
            A(m[1])
            A(rd[3]); A(rd[4]); A(rd[5])
            A(m[2])
            A(rd[6]); A(rd[7])
            for x in m[3:]:
                A(x)
        else:
            for x in m[1:]:
                A(x)
    A("s_waitcnt lgkmcnt(0)")
    A("s_nop 7")
    PK = [16, 24, 32, 40, 48, 56]
    for sec in range(3):
        for tt in range(2):
            i = sec * 2 + tt
            a = ACC + 16 * i
            p = PK[i]
            if sec == 0:
                for r in range(16):
                    A("v_mul_f32 v%d, s51, v%d" % (a + r, a + r))
            for r in range(8):
                A("v_cvt_pk_bf16_f32 v%d, v%d, v%d" % (p + r, a + 2 * r, a + 2 * r + 1))
            if sec < 2:
                A("v_cndmask_b32 v%d, 0, v%d, s[42:43]" % (p + 6, p + 6))
                A("v_cndmask_b32 v%d, 0, v%d, s[42:43]" % (p + 7, p + 7))
            else:
                for r in range(8):
                    A("v_cndmask_b32 v%d, v%d, v%d, s[44:45]" % (p + r, VC, p + r))
            for s in range(2):
                if sec == 0:
                    so, imm = 48, tt * 2048 + s * 1024
                else:
                    so, imm = 49 + tt, (sec - 1) * 2048 + s * 1024
                A("buffer_store_dwordx4 %s, v%d, s[12:15], s%d offen offset:%d" % (vr(p + 4 * s, 4), VST, so, imm))
    ts_end(A, 0, 4, 32)
    A("s_endpgm")

    A.label(Lload)
    A("s_sub_u32 s38, s32, 4")
    VX = 4
    VW = 5
    A("v_lshrrev_b32 v12, 4, v2")
    A("s_and_b32 s39, s38, 1")
    A("s_lshl_b32 s39, s39, 2")
    A("v_xor_b32 v12, s39, v12")
    A("v_and_b32 v13, 7, v2")
    A("v_xor_b32 v12, v12, v13")
    A("v_lshlrev_b32 v12, 4, v12")
    A("v_lshrrev_b32 v13, 3, v2")
    A("s_lshl_b32 s39, s35, 7")
    A("s_lshl_b32 s40, s38, 3")
    A("s_add_u32 s39, s39, s40")
    A("v_add_u32 v13, s39, v13")
    A("v_mul_u32_u24 v13, 896, v13")
    A("v_add_u32 v%d, v12, v13" % VX)
    A("s_lshl_b32 s40, s38, 6")
    A("v_add_u32 v12, s40, v2")
    for m in range(6):
        A("v_add_u32 v13, %d, v12" % (m * 256))
        A("v_mul_u32_u24 v14, 3121, v13")
        A("v_lshrrev_b32 v14, 16, v14")
        A("v_mul_u32_u24 v15, 21, v14")
        A("v_sub_u32 v15, v13, v15")
        A("v_mul_u32_u24 v16, 37, v15")
        A("v_lshrrev_b32 v16, 8, v16")
        A("v_mul_u32_u24 v16, %d, v16" % (896 - 112))
        A("v_lshl_add_u32 v16, v15, 4, v16")
        A("v_and_b32 v15, 3, v14")
        A("v_lshlrev_b32 v15, 2, v15")
        A("v_bfe_u32 v17, v14, 2, 2")
        A("v_and_b32 v14, -16, v14")
        A("v_or3_b32 v14, v14, v15, v17")
        A("v_mul_u32_u24 v14, 2688, v14")
        A("v_add_u32 v%d, v14, v16" % (VW + m))
    A("s_and_b32 s41, s36, 7")
    A("s_mul_i32 s41, s41, 112")
    A("s_lshl_b32 s42, s38, 10")
    A("s_waitcnt lgkmcnt(0)")
    A("s_mov_b32 s4, s20")
    A("s_mov_b32 s5, s21")
    A("s_mov_b32 s6, %d" % (2048 * 896))
    A("s_mov_b32 s7, 0x00020000")
    A("s_cmp_ge_u32 s36, 8")
    A("s_cselect_b32 s8, s28, s22")
    A("s_cselect_b32 s9, s29, s23")
    A("s_mov_b32 s10, %d" % (448 * 2688))
    A("s_mov_b32 s11, 0x00020000")
    A("s_mov_b32 s18, 896")
    A("s_mov_b32 s19, 0x00020000")
    Lextra = "Lk1_loader_x"
    A("s_cmp_eq_u32 s38, 0")
    A("s_cbranch_scc1 %s" % Lextra)

    def loader_body(nw):
        def issue(c):
            slot = c & 3
            for m in range(4):
                A("s_add_u32 m0, s42, %d" % (slot * K1_SLOT + m * 4096))
                A("s_mov_b32 s43, %d" % (m * 28672 + c * 128))
                A("buffer_load_dwordx4 v%d, s[4:7], s43 offen lds" % VX)
            A("s_add_u32 s44, s41, %d" % (c * 64 * 2688))
            for m in range(nw):
                A("s_add_u32 m0, s42, %d" % (slot * K1_SLOT + K1_XB + m * 4096))
                A("s_nop 0")
                A("buffer_load_dwordx4 v%d, s[8:11], s44 offen lds" % (VW + m))
        per = 4 + nw
        for c in range(4):
            issue(c)
        issued = 4
        extra = 0
        for c in range(7):
            newer = (issued - 1 - c) * per + extra
            A("s_waitcnt vmcnt(%d)" % newer)
            A("s_barrier")
            if 1 <= c <= 3:
                issue(c + 3)
                issued += 1
            if c == 3:
                extra = side_loads()
        side_finish()

    def side_loads():
        A.c("gate loads")
        A("v_lshlrev_b32 v20, 4, v2")
        A("v_cmp_gt_u32 vcc, 56, v2")
        A("v_mov_b32 v21, 0x80000000")
        A("s_lshl_b32 s46, s35, 7")
        A("s_lshl_b32 s47, s36, 3")
        A("s_add_u32 s46, s46, s47")
        A("s_lshl_b32 s47, s38, 1")
        A("s_add_u32 s46, s46, s47")
        A("v_cndmask_b32 v20, v21, v20, vcc")
        A("s_mul_i32 s47, s46, 896")
        A("buffer_load_dwordx4 v[24:27], v20, s[16:19], 0 offen")
        A("buffer_load_dwordx4 v[28:31], v20, s[4:7], s47 offen")
        A("buffer_load_dwordx4 v[32:35], v20, s[4:7], s47 offen offset:896")
        A.c("Wo gather: f = wg*4+lw ; s=f&1 hb=(f>>1)&31 nt=f>>6")
        A("s_lshl_b32 s48, s2, 2")
        A("s_add_u32 s48, s48, s38")
        A("s_bitcmp1_b32 s48, 5")
        A("s_cselect_b32 s52, s30, s24")
        A("s_cselect_b32 s53, s31, s25")
        A("s_mov_b32 s54, %d" % (448 * 896))
        A("s_mov_b32 s55, 0x00020000")
        A("s_bfe_u32 s49, s48, 0x40001")
        A("s_mul_i32 s49, s49, 28")
        A("s_and_b32 s50, s48, 1")
        A("s_lshl_b32 s51, s50, 4")
        A("s_add_u32 s49, s49, s51")
        A("s_mul_i32 s49, s49, 896")
        A("s_and_b32 s51, s48, -64")
        A("s_add_u32 s49, s49, s51")
        A("s_cmp_ge_u32 s48, 896")
        A("s_cselect_b32 s49, 0, s49")
        A("v_lshrrev_b32 v22, 5, v2")
        A("v_mul_u32_u24 v22, %d, v22" % (4 * 896))
        A("v_and_b32 v23, 31, v2")
        A("v_lshl_add_u32 v22, v23, 1, v22")
        A("v_add_u32 v23, %d, v22" % (8 * 896))
        A("s_lshl_b32 s50, s50, 5")
        A("s_sub_u32 s50, 64, s50")
        A("v_cmp_gt_u32 vcc, s50, v2")
        A("s_nop 1")
        A("v_cndmask_b32 v23, v21, v23, vcc")
        for j in range(8):
            A("buffer_load_ushort v%d, v%d, s[52:55], s49 offen offset:%d" % (36 + j, 22 + (j >> 2), (j & 3) * 896))
        return 11

    def side_finish():
        A("s_waitcnt vmcnt(8)")
        A("v_mov_b32 v44, 0")
        A("v_mov_b32 v45, 0")
        for k in range(4):
            A("v_dot2_f32_bf16 v44, v%d, v%d, v44" % (24 + k, 28 + k))
            A("v_dot2_f32_bf16 v45, v%d, v%d, v45" % (24 + k, 32 + k))
        A("s_nop 3")
        for dpp in ("row_shr:1", "row_shr:2", "row_shr:4", "row_shr:8", "row_bcast:15 row_mask:0xa", "row_bcast:31 row_mask:0xc"):
            A("v_add_f32_dpp v44, v44, v44 %s" % dpp)
            A("v_add_f32_dpp v45, v45, v45 %s" % dpp)
            A("s_nop 1")
        A("v_mul_f32 v44, %s, v44" % f32(-math.log2(math.e)))
        A("v_mul_f32 v45, %s, v45" % f32(-math.log2(math.e)))
        A("v_exp_f32 v44, v44")
        A("v_exp_f32 v45, v45")
        A("s_nop 0")
        A("v_add_f32 v44, 1.0, v44")
        A("v_add_f32 v45, 1.0, v45")
        A("v_rcp_f32 v44, v44")
        A("v_rcp_f32 v45, v45")
        A("v_cmp_eq_u32 vcc, 63, v2")
        A("v_mov_b32 v46, 0")
        A("s_lshl_b32 s46, s46, 2")
        A("s_add_u32 s46, s46, %d" % WS_G)
        A("v_cndmask_b32 v46, v21, v46, vcc")
        A("buffer_store_dwordx2 v[44:45], v46, s[12:15], s46 offen")
        A("s_waitcnt vmcnt(1)")
        for k in range(4):
            A("v_lshl_or_b32 v%d, v%d, 16, v%d" % (48 + k, 37 + 2 * k, 36 + 2 * k))
        A("v_lshlrev_b32 v20, 4, v2")
        A("s_lshl_b32 s49, s48, 10")
        A("s_add_u32 s49, s49, %d" % WS_WO)
        Lsk = A.newlabel("k1sk")
        A("s_cmp_ge_u32 s48, 896")
        A("s_cbranch_scc1 %s" % Lsk)
        A("buffer_store_dwordx4 v[48:51], v20, s[12:15], s49 offen")
        A.label(Lsk)
        ts_end(A, 0, 4, 32)
        A("s_endpgm")

    loader_body(5)
    A.label(Lextra)
    loader_body(6)
    A.label(Lend)
    A("s_endpgm")
    return name, descriptor(name, 160, 160), "grid=(256,1,1) block=(512,1,1) lds=%d" % (4 * K1_SLOT)


def gen_k2(A):
    name = "attn_kernel"
    kernel_begin(A, name)
    Lend = "Lk2_end"
    Q, NM, S, O, P = 8, 16, [32, 48], 64, 80
    K0, K1, V0, V1, E = 88, 92, 96, 100, 104
    VCUR, VNXT, VDMA, VL16, VG = 2, 3, 4, 5, 6
    ts_begin(A)
    A("s_cmp_ge_u32 s2, 256")
    A("s_cbranch_scc1 %s" % Lend)
    A("s_load_dwordx2 s[12:13], s[0:1], 72")
    A("v_lshrrev_b32 v1, 6, v0")
    A("v_and_b32 v7, 63, v0")
    A("v_lshlrev_b32 v%d, 4, v7" % VL16)
    A("v_readfirstlane_b32 s32, v1")
    A("s_and_b32 s33, s2, 7")
    A("s_lshl_b32 s33, s33, 2")
    A("s_bfe_u32 s34, s2, 0x20003")
    A("s_add_u32 s33, s33, s34")
    A("s_lshr_b32 s34, s2, 5")
    A("s_lshl_b32 s34, s34, 3")
    A("s_add_u32 s34, s34, s32")
    A("s_lshl_b32 s35, s32, 12")
    A("v_add_u32 v%d, s35, v%d" % (VDMA, VL16))
    A("v_mov_b32 v%d, v%d" % (VCUR, VL16))
    A("v_add_u32 v%d, 0x8000, v%d" % (VNXT, VL16))
    A("s_lshl_b32 s36, s33, 18")
    A("s_add_u32 s36, s36, %d" % WS_KV)
    A("s_mov_b32 s14, %d" % WS_USED)
    A("s_mov_b32 s15, 0x00020000")
    A("s_mov_b32 s6, 0x40000")
    A("s_mov_b32 s7, 0x00020000")
    A("s_lshl_b32 s37, s33, 17")
    A("s_lshl_b32 s38, s34, 11")
    A("s_add_u32 s37, s37, s38")
    A("s_lshl_b32 s38, s34, 7")
    A("s_add_u32 s38, s38, %d" % WS_G)
    A("v_and_b32 v1, 31, v7")
    A("v_lshlrev_b32 v1, 2, v1")
    A("s_waitcnt lgkmcnt(0)")
    A("s_add_u32 s4, s12, s36")
    A("s_addc_u32 s5, s13, 0")

    def dma(soff_sgpr, m0expr):
        A(m0expr)
        A("s_nop 0")
        for p in range(4):
            A("buffer_load_dwordx4 v%d, s[4:7], %s offen offset:%d lds" % (VDMA, soff_sgpr, p * 1024))

    A("buffer_load_dwordx4 %s, v%d, s[12:15], s37 offen" % (vr(Q, 4), VL16))
    A("buffer_load_dwordx4 %s, v%d, s[12:15], s37 offen offset:1024" % (vr(Q + 4, 4), VL16))
    dma("0", "s_mov_b32 m0, s35")
    A("buffer_load_dword v%d, v1, s[12:15], s38 offen" % VG)
    A("s_mov_b32 s40, 0x8000")
    dma("s40", "s_add_u32 m0, s35, 0x8000")
    A("s_mov_b32 s40, 0x10000")
    dma("s40", "s_add_u32 m0, s35, 0x10000")
    A("s_mov_b32 s40, 0x18000")
    A("s_mov_b32 s41, 8")
    for r in range(16):
        A("v_mov_b32 v%d, 0" % (O + r))
    A("s_waitcnt vmcnt(9)")
    A("s_barrier")

    def rd(dst, base, tile, part):
        A("ds_read_b128 %s, v%d offset:%d" % (vr(dst, 4), base, tile * 4096 + part * 1024))

    def mf(d, a, b, c):
        A("v_mfma_f32_32x32x16_bf16 %s, %s, %s, %s" % (vr(d, 16), vr(a, 4), vr(b, 4), c))

    rd(K0, VCUR, 0, 0)
    rd(K1, VCUR, 0, 1)
    rd(V0, VCUR, 0, 2)
    A("s_waitcnt lgkmcnt(1)")
    mf(S[1], K0, Q, "0")
    mf(S[1], K1, Q + 4, vr(S[1], 16))
    A("s_nop 11")
    s = S[1]
    A("v_max3_f32 v%d, v%d, v%d, v%d" % (E, s, s + 1, s + 2))
    A("v_max3_f32 v%d, v%d, v%d, v%d" % (E + 1, s + 3, s + 4, s + 5))
    A("v_max3_f32 v%d, v%d, v%d, v%d" % (E + 2, s + 6, s + 7, s + 8))
    A("v_max3_f32 v%d, v%d, v%d, v%d" % (E + 3, s + 9, s + 10, s + 11))
    A("v_max3_f32 v%d, v%d, v%d, v%d" % (E, E, s + 12, s + 13))
    A("v_max3_f32 v%d, v%d, v%d, v%d" % (E + 1, E + 1, s + 14, s + 15))
    A("v_max3_f32 v%d, v%d, v%d, v%d" % (E, E, E + 2, E + 3))
    A("v_max_f32 v%d, v%d, v%d" % (E, E, E + 1))
    A("v_mov_b32 v%d, v%d" % (E + 1, E))
    A("s_nop 1")
    A("v_permlane32_swap_b32 v%d, v%d" % (E, E + 1))
    A("s_nop 1")
    A("v_max_f32 v%d, v%d, v%d" % (E, E, E + 1))
    for r in range(16):
        A("v_sub_f32 v%d, 0, v%d" % (NM + r, E))
    for r in range(4):
        A("v_mov_b32 v%d, 0" % (P + 4 + r))
        A("v_mov_b32 v%d, 0" % (V1 + r))
    A("v_mov_b32 v%d, 0" % (E + 2))
    A("v_mov_b32 v%d, 0" % (E + 3))
    mf(S[0], K0, Q, vr(NM, 16))
    mf(S[0], K1, Q + 4, vr(S[0], 16))
    rd(K0, VCUR, 1, 0)
    rd(K1, VCUR, 1, 1)
    A("s_waitcnt lgkmcnt(0)")
    A("s_nop 7")

    Lloop = "Lk2_loop"
    A.raw(".p2align 6")
    A.label(Lloop)
    for i in range(8):
        sc = S[i & 1]
        sn = S[(i + 1) & 1]

        def grp(g, pprev):
            A("v_cvt_pk_bf16_f32 v%d, v%d, v%d" % (pprev, E + 2, E + 3))
            for k in range(4):
                A("v_exp_f32 v%d, v%d" % (E + k, sc + 4 * g + k))
            A("v_cvt_pk_bf16_f32 v%d, v%d, v%d" % (P + 2 * g, E, E + 1))

        if i == 6:
            A("s_waitcnt vmcnt(4)")
            A("s_barrier")
        kb, kt = (VCUR, i + 2) if i + 2 < 8 else (VNXT, i + 2 - 8)
        vb, vt = (VCUR, i + 1) if i + 1 < 8 else (VNXT, 0)
        A("s_waitcnt lgkmcnt(3)")
        mf(sn, K0, Q, vr(NM, 16))
        rd(K0, kb, kt, 0)
        grp(0, P + 7)
        A("s_waitcnt lgkmcnt(3)")
        mf(sn, K1, Q + 4, vr(sn, 16))
        rd(K1, kb, kt, 1)
        if i == 6:
            A("s_and_b32 s42, s40, 0x18000")
            A("s_add_u32 m0, s42, s35")
        grp(1, P + 1)
        if i == 6:
            for p in range(4):
                A("buffer_load_dwordx4 v%d, s[4:7], s40 offen offset:%d lds" % (VDMA, p * 1024))
            A("s_add_u32 s40, s40, 0x8000")
        A("s_waitcnt lgkmcnt(3)")
        mf(O, V1, P + 4, vr(O, 16))
        rd(V1, VCUR, i, 3)
        grp(2, P + 3)
        A("s_waitcnt lgkmcnt(3)")
        mf(O, V0, P, vr(O, 16))
        rd(V0, vb, vt, 2)
        if i == 7:
            A("v_mov_b32 v%d, v%d" % (VCUR, VNXT))
            A("v_add_u32 v%d, 0x8000, v%d" % (VNXT, VNXT))
            A("v_and_b32 v%d, 0x1ffff, v%d" % (VNXT, VNXT))
            A("s_sub_u32 s41, s41, 1")
            A("s_cmp_lg_u32 s41, 0")
        grp(3, P + 5)
    A("s_cbranch_scc1 %s" % Lloop)
    A("v_cvt_pk_bf16_f32 v%d, v%d, v%d" % (P + 7, E + 2, E + 3))
    A("s_waitcnt lgkmcnt(0)")
    A("s_nop 0")
    mf(O, V1, P + 4, vr(O, 16))
    A("s_nop 11")
    Lepi = "Lk2_epi"
    Lfb = "Lk2_fallback"
    A("v_max3_f32 v%d, |v%d|, |v%d|, |v%d|" % (E, O, O + 1, O + 2))
    A("v_max3_f32 v%d, |v%d|, |v%d|, |v%d|" % (E + 1, O + 3, O + 4, O + 5))
    A("v_max3_f32 v%d, |v%d|, |v%d|, |v%d|" % (E + 2, O + 6, O + 7, O + 8))
    A("v_max3_f32 v%d, |v%d|, |v%d|, |v%d|" % (E + 3, O + 9, O + 10, O + 11))
    A("v_max3_f32 v%d, v%d, |v%d|, |v%d|" % (E, E, O + 12, O + 13))
    A("v_max3_f32 v%d, v%d, |v%d|, |v%d|" % (E + 1, E + 1, O + 14, O + 15))
    A("v_max3_f32 v%d, v%d, v%d, v%d" % (E, E, E + 2, E + 3))
    A("v_max_f32 v%d, v%d, v%d" % (E, E, E + 1))
    A("v_add_f32 v%d, v%d, v%d" % (E + 1, O, O + 1))
    for r in range(2, 16):
        A("v_add_f32 v%d, v%d, v%d" % (E + 1, E + 1, O + r))
    A("v_mov_b32 v%d, %s" % (E + 2, f32(2.0 ** 100)))
    A("v_cmp_nle_f32 vcc, v%d, v%d" % (E, E + 2))
    A("v_cmp_u_f32 s[44:45], v%d, v%d" % (E + 1, E + 1))
    A("s_nop 3")
    A("s_or_b64 vcc, vcc, s[44:45]")
    A("s_cbranch_vccnz %s" % Lfb)
    A.label(Lepi)
    A("s_waitcnt vmcnt(0)")
    A("v_mov_b32 v%d, v%d" % (E, O + 12))
    A("v_mov_b32 v%d, v%d" % (E + 1, O + 12))
    A("s_cmp_ge_u32 s33, 16")
    A("s_cselect_b32 s44, -1.0, 1.0")
    A("s_cselect_b32 s45, 1.0, 0")
    A("v_permlane32_swap_b32 v%d, v%d" % (E, E + 1))
    A("v_mov_b32 v%d, s45" % (E + 2))
    A("v_fma_f32 v%d, s44, v%d, v%d" % (E + 2, VG, E + 2))
    A("v_rcp_f32 v%d, v%d" % (E + 1, E + 1))
    A("v_cmp_gt_u32 vcc, 32, v7")
    A("s_lshl_b32 s46, s34, 16")
    A("s_lshl_b32 s47, s33, 11")
    A("v_mul_f32 v%d, v%d, v%d" % (E + 1, E + 1, E + 2))
    A("s_add_u32 s46, s46, s47")
    A("s_add_u32 s46, s46, %d" % WS_O)
    for r in range(16):
        A("v_mul_f32 v%d, v%d, v%d" % (O + r, O + r, E + 1))
    for r in range(8):
        A("v_cvt_pk_bf16_f32 v%d, v%d, v%d" % (P + r, O + 2 * r, O + 2 * r + 1))
    A("v_cndmask_b32 v%d, 0, v%d, vcc" % (P + 6, P + 6))
    A("v_cndmask_b32 v%d, 0, v%d, vcc" % (P + 7, P + 7))
    A("buffer_store_dwordx4 %s, v%d, s[12:15], s46 offen" % (vr(P, 4), VL16))
    A("buffer_store_dwordx4 %s, v%d, s[12:15], s46 offen offset:1024" % (vr(P + 4, 4), VL16))
    ts_end(A, 1, 8, 32)
    A.label(Lend)
    A("s_endpgm")

    A.label(Lfb)
    A("s_waitcnt vmcnt(0)")
    A("v_mov_b32 v%d, 0xff800000" % E)
    A("s_mov_b32 s42, 0")
    A.label("Lk2_fb1")
    A("buffer_load_dwordx4 %s, v%d, s[4:7], s42 offen" % (vr(K0, 4), VL16))
    A("buffer_load_dwordx4 %s, v%d, s[4:7], s42 offen offset:1024" % (vr(K1, 4), VL16))
    A("s_waitcnt vmcnt(0)")
    mf(S[0], K0, Q, "0")
    mf(S[0], K1, Q + 4, vr(S[0], 16))
    A("s_nop 11")
    for r in range(0, 16, 2):
        A("v_max3_f32 v%d, v%d, v%d, v%d" % (E, E, S[0] + r, S[0] + r + 1))
    A("s_add_u32 s42, s42, 4096")
    A("s_cmp_lt_u32 s42, 0x40000")
    A("s_cbranch_scc1 Lk2_fb1")
    A("v_mov_b32 v%d, v%d" % (E + 1, E))
    A("s_nop 1")
    A("v_permlane32_swap_b32 v%d, v%d" % (E, E + 1))
    A("s_nop 1")
    A("v_max_f32 v%d, v%d, v%d" % (E, E, E + 1))
    for r in range(16):
        A("v_sub_f32 v%d, 0, v%d" % (NM + r, E))
        A("v_mov_b32 v%d, 0" % (O + r))
    A("s_mov_b32 s42, 0")
    A.label("Lk2_fb2")
    for k, reg in enumerate((K0, K1, V0, V1)):
        A("buffer_load_dwordx4 %s, v%d, s[4:7], s42 offen offset:%d" % (vr(reg, 4), VL16, k * 1024))
    A("s_waitcnt vmcnt(0)")
    mf(S[0], K0, Q, vr(NM, 16))
    mf(S[0], K1, Q + 4, vr(S[0], 16))
    A("s_nop 11")
    for r in range(16):
        A("v_exp_f32 v%d, v%d" % (S[0] + r, S[0] + r))
    A("s_nop 0")
    for r in range(8):
        A("v_cvt_pk_bf16_f32 v%d, v%d, v%d" % (P + r, S[0] + 2 * r, S[0] + 2 * r + 1))
    A("s_nop 1")
    mf(O, V0, P, vr(O, 16))
    mf(O, V1, P + 4, vr(O, 16))
    A("s_add_u32 s42, s42, 4096")
    A("s_cmp_lt_u32 s42, 0x40000")
    A("s_cbranch_scc1 Lk2_fb2")
    A("s_nop 11")
    A("s_branch %s" % Lepi)
    return name, descriptor(name, 112, 112), "grid=(256,1,1) block=(512,1,1) lds=131072"


def gen_k3(A):
    name = "oproj_kernel"
    kernel_begin(A, name)
    Lend = "Lk3_end"
    ACC = 16
    VO = 4
    ts_begin(A)
    A("s_cmp_ge_u32 s2, 224")
    A("s_cbranch_scc1 %s" % Lend)
    A("s_load_dwordx2 s[12:13], s[0:1], 72")
    A("s_load_dwordx2 s[8:9], s[0:1], 56")
    A("v_lshrrev_b32 v1, 6, v0")
    A("v_and_b32 v2, 63, v0")
    A("v_lshlrev_b32 v3, 4, v2")
    A("v_readfirstlane_b32 s32, v1")
    A("s_and_b32 s33, s2, 7")
    A("s_lshl_b32 s33, s33, 2")
    A("s_bfe_u32 s34, s2, 0x20003")
    A("s_add_u32 s33, s33, s34")
    A("s_lshr_b32 s34, s2, 5")
    A("s_lshl_b32 s35, s32, 14")
    A("v_add_u32 v%d, s35, v3" % VO)
    for g in range(1, 4):
        A("v_add_u32 v%d, %d, v%d" % (VO + g, 4096 * g, VO))
    A("s_lshl_b32 s36, s33, 17")
    A("s_add_u32 s36, s36, %d" % WS_O)
    A("s_add_u32 s37, s36, 65536")
    A("s_lshl_b32 s38, s34, 17")
    A("s_add_u32 s38, s38, %d" % WS_WO)
    A("s_add_u32 s39, s38, 65536")
    A("s_mov_b32 s14, %d" % WS_USED)
    A("s_mov_b32 s15, 0x00020000")
    A("s_mov_b32 s10, %d" % (2048 * 896))
    A("s_mov_b32 s11, 0x00020000")
    A("s_waitcnt lgkmcnt(0)")

    def loads(k):
        for j, so in enumerate((36, 38, 37, 39)):
            A("buffer_load_dwordx4 %s, v%d, s[12:15], s%d offen offset:%d" % (
                ar(16 * k + 4 * j, 4), VO + (k >> 2), so, (k & 3) * 1024))

    for k in range(15):
        loads(k)
    for k in range(16):
        A("s_waitcnt vmcnt(%d)" % (56 if k == 0 else 4 * (15 - k)))
        for nt in range(2):
            for tt in range(2):
                d = vr(ACC + 16 * (nt * 2 + tt), 16)
                A("v_mfma_f32_32x32x16_bf16 %s, %s, %s, %s" % (
                    d, ar(16 * k + 4 + 8 * nt, 4), ar(16 * k + 8 * tt, 4), "0" if k == 0 else d))
        if k == 0:
            loads(15)
    A("s_lshl_b32 s40, s32, 12")
    A("v_add_u32 v8, s40, v3")
    A("s_lshl_b32 s41, s32, 14")
    A("v_add_u32 v9, s41, v3")
    A("s_nop 7")
    for t in range(4):
        L = A.newlabel("k3w")
        A("s_cmp_eq_u32 s32, %d" % t)
        A("s_cbranch_scc1 %s" % L)
        if t == 3:
            A("s_nop 4")
        for q in range(4):
            A("ds_write_b128 v8, %s offset:%d" % (vr(ACC + 16 * t + 4 * q, 4), t * 16384 + q * 1024))
        A.label(L)
    for t in range(4):
        L = A.newlabel("k3m")
        A("s_cmp_lg_u32 s32, %d" % t)
        A("s_cbranch_scc1 %s" % L)
        A("s_nop 4")
        for r in range(16):
            A("v_mov_b32 v%d, v%d" % (80 + r, ACC + 16 * t + r))
        A.label(L)
    A("s_waitcnt lgkmcnt(0)")
    A("s_barrier")
    for j in range(1, 4):
        A("s_xor_b32 s42, s32, %d" % j)
        A("s_lshl_b32 s42, s42, 12")
        A("v_add_u32 v10, s42, v9")
        for q in range(4):
            A("ds_read_b128 %s, v10 offset:%d" % (vr(ACC + 16 * (j - 1) + 4 * q, 4), q * 1024))
    A("v_and_b32 v11, 31, v2")
    A("v_mul_u32_u24 v11, 896, v11")
    A("v_lshrrev_b32 v12, 5, v2")
    A("v_lshl_add_u32 v11, v12, 4, v11")
    A("s_lshl_b32 s43, s33, 1")
    A("s_and_b32 s44, s32, 1")
    A("s_add_u32 s43, s43, s44")
    A("s_mul_i32 s43, s43, %d" % (32 * 896))
    A("s_lshl_b32 s44, s34, 7")
    A("s_add_u32 s43, s43, s44")
    A("s_lshr_b32 s44, s32, 1")
    A("s_lshl_b32 s44, s44, 6")
    A("s_add_u32 s43, s43, s44")
    for j in range(3):
        A("s_waitcnt lgkmcnt(%d)" % (4 * (2 - j)))
        for r in range(16):
            A("v_add_f32 v%d, v%d, v%d" % (80 + r, 80 + r, ACC + 16 * j + r))
    for r in range(8):
        A("v_cvt_pk_bf16_f32 v%d, v%d, v%d" % (16 + r, 80 + 2 * r, 80 + 2 * r + 1))
    A("s_nop 1")
    A("v_permlane32_swap_b32 v16, v18")
    A("v_permlane32_swap_b32 v17, v19")
    A("v_permlane32_swap_b32 v20, v22")
    A("v_permlane32_swap_b32 v21, v23")
    A("s_nop 1")
    A("buffer_store_dwordx4 v[16:19], v11, s[8:11], s43 offen")
    A("buffer_store_dwordx4 v[20:23], v11, s[8:11], s43 offen offset:32")
    ts_end(A, 2, 4, 32)
    A.label(Lend)
    A("s_endpgm")
    return name, descriptor(name, 96 + 256, 96), "grid=(224,1,1) block=(256,1,1) lds=65536"


def main(out, timing=False):
    global TIMING
    TIMING = timing
    A = Asm()
    ks = [gen_k1(A), gen_k2(A), gen_k3(A)]
    head = [
        "; gated dual-branch MHA block: QKV projection -> attention -> output projection",
    ]
    for n, d, l in ks:
        head.append("; @launch kernel=%s %s" % (n, l))
    head.append('.amdgcn_target "amdgcn-amd-amdhsa--gfx950"')
    head.append(".text")
    txt = "\n".join(head) + "\n" + A.text() + '.section .rodata,"a"\n' + "\n".join(d for n, d, l in ks) + "\n"
    open(out, "w").write(txt)


if __name__ == "__main__":
    out = sys.argv[1] if len(sys.argv) > 1 else "cdna_kernels/%s.s" % NAME
    main(out, timing=("--ts" in sys.argv))
```

```python
import sys, struct, math

NAME = "gated_mix__softmax_full_mha__mha_block__prompt"
NKERN = 3
TIMING = False

WS_Q = 0
WS_KV = 4 << 20
WS_G = 12 << 20
WS_O = 16 << 20
WS_WO = 20 << 20
WS_TS = 64 << 20
WS_USED = 24 << 20

QSCALE = (28.0 ** -0.5) * math.log2(math.e)


def f32(x):
    return "0x%08x" % struct.unpack("<I", struct.pack("<f", x))[0]


class Asm:
    def __init__(self):
        self.lines = []
        self.nlab = 0

    def __call__(self, s):
        self.lines.append("    " + s)

    def raw(self, s):
        self.lines.append(s)

    def label(self, s):
        self.lines.append(s + ":")

    def newlabel(self, p):
        self.nlab += 1
        return "L%s_%d" % (p, self.nlab)

    def c(self, s):
        self.lines.append("    ; " + s)

    def text(self):
        return "\n".join(self.lines) + "\n"


def vr(a, n):
    return "v[%d:%d]" % (a, a + n - 1) if n > 1 else "v%d" % a


def ar(a, n):
    return "a[%d:%d]" % (a, a + n - 1) if n > 1 else "a%d" % a


def sr(a, n):
    return "s[%d:%d]" % (a, a + n - 1) if n > 1 else "s%d" % a


def kernel_begin(A, name):
    A.raw(".globl %s" % name)
    A.raw(".p2align 8")
    A.raw(".type %s,@function" % name)
    A.label(name)


def descriptor(name, nvgpr, accum, nsgpr=96):
    return "\n".join([
        ".p2align 6",
        ".amdhsa_kernel %s" % name,
        "  .amdhsa_next_free_vgpr %d" % nvgpr,
        "  .amdhsa_next_free_sgpr %d" % nsgpr,
        "  .amdhsa_accum_offset %d" % accum,
        "  .amdhsa_group_segment_fixed_size 0",
        "  .amdhsa_kernarg_size 80",
        "  .amdhsa_user_sgpr_count 2",
        "  .amdhsa_user_sgpr_kernarg_segment_ptr 1",
        "  .amdhsa_system_sgpr_workgroup_id_x 1",
        ".end_amdhsa_kernel",
    ])


def ts_begin(A):
    if TIMING:
        A("s_memrealtime s[88:89]")
        A("s_memtime s[82:83]")


def ts_end(A, kidx, vt0, wave_sgpr):
    if not TIMING:
        return
    if TIMING == "dbg":
        L = A.newlabel("tsd")
        A("s_waitcnt vmcnt(0) lgkmcnt(0)")
        A("s_memrealtime s[90:91]")
        A("s_memtime s[94:95]")
        A("s_load_dwordx2 s[84:85], s[0:1], 64")
        A("s_waitcnt lgkmcnt(0)")
        A("s_sub_u32 s94, s94, s82")
        A("s_add_u32 s84, s84, %d" % (512 * (NKERN - 1 - kidx)))
        A("s_addc_u32 s85, s85, 0")
        A("s_mov_b32 s86, 256")
        A("s_mov_b32 s87, 0x00020000")
        A("s_cmp_lg_u32 s%d, 0" % wave_sgpr)
        A("s_cbranch_scc1 %s" % L)
        A("s_mov_b32 s92, %d" % (kidx * 20))
        A("s_cmp_eq_u32 s2, 223")
        A("s_cselect_b32 s92, %d, s92" % (kidx * 20 + 8))
        A("s_cselect_b32 s93, 0, s2")
        A("s_cmp_lg_u32 s93, 0")
        A("s_cbranch_scc1 %s" % L)
        A("v_mov_b32 v%d, s88" % vt0)
        A("v_mov_b32 v%d, s90" % (vt0 + 1))
        A("v_mov_b32 v%d, s94" % (vt0 + 2))
        A("v_mov_b32 v%d, 0" % (vt0 + 4))
        A("s_mov_b64 exec, 1")
        A("buffer_store_dwordx2 %s, v%d, s[84:87], s92 offen" % (vr(vt0, 2), vt0 + 4))
        A("buffer_store_dword v%d, v%d, s[84:87], 0 offen offset:%d" % (vt0 + 2, vt0 + 4, kidx * 20 + 16))
        A.label(L)
        return
    A("s_waitcnt vmcnt(0) lgkmcnt(0)")
    A("s_memrealtime s[90:91]")
    A("s_memtime s[94:95]")
    A("s_load_dwordx2 s[84:85], s[0:1], 72")
    A("s_waitcnt lgkmcnt(0)")
    A("s_sub_u32 s94, s94, s82")
    A("s_mov_b32 s86, 0x8000000")
    A("s_mov_b32 s87, 0x00020000")
    A("s_lshl_b32 s92, s2, 3")
    A("s_add_u32 s92, s92, s%d" % wave_sgpr)
    A("s_lshl_b32 s92, s92, 4")
    A("s_add_u32 s92, s92, %d" % (WS_TS + kidx * 65536))
    A("v_mov_b32 v%d, s88" % vt0)
    A("v_mov_b32 v%d, s90" % (vt0 + 1))
    A("v_mov_b32 v%d, s94" % (vt0 + 2))
    A("s_sub_u32 s80, s80, s82")
    A("v_mov_b32 v%d, s80" % (vt0 + 3))
    A("v_mov_b32 v%d, 0" % (vt0 + 4))
    A("s_mov_b64 exec, 1")
    A("buffer_store_dwordx4 %s, v%d, s[84:87], s92 offen" % (vr(vt0, 4), vt0 + 4))


def ts_mid(A):
    if TIMING:
        A("s_memtime s[80:81]")
        A("s_waitcnt lgkmcnt(0)")


K1_SLOT = 37888
K1_XB = 16384


def gen_k1(A):
    name = "qkv_kernel"
    kernel_begin(A, name)
    Lend = "Lk1_end"
    Lload = "Lk1_loader"
    ts_begin(A)
    A("s_cmp_ge_u32 s2, 256")
    A("s_cbranch_scc1 %s" % Lend)
    A("s_load_dwordx4 s[20:23], s[0:1], 0")
    A("s_load_dwordx2 s[24:25], s[0:1], 16")
    A("s_load_dwordx4 s[28:31], s[0:1], 32")
    A("s_load_dwordx2 s[16:17], s[0:1], 48")
    A("s_load_dwordx2 s[12:13], s[0:1], 72")
    A("v_lshrrev_b32 v1, 6, v0")
    A("v_and_b32 v2, 63, v0")
    A("s_and_b32 s33, s2, 7")
    A("s_lshr_b32 s34, s2, 3")
    A("v_readfirstlane_b32 s32, v1")
    A("s_and_b32 s35, s33, 1")
    A("s_lshl_b32 s35, s35, 3")
    A("s_and_b32 s36, s34, 7")
    A("s_add_u32 s35, s35, s36")
    A("s_lshr_b32 s36, s33, 1")
    A("s_lshl_b32 s36, s36, 2")
    A("s_lshr_b32 s37, s34, 3")
    A("s_add_u32 s36, s36, s37")
    A("s_mov_b32 s14, %d" % WS_USED)
    A("s_mov_b32 s15, 0x00020000")
    A("s_cmp_ge_u32 s32, 4")
    A("s_cbranch_scc1 %s" % Lload)

    XA, XB, WA, WB = 4, 8, 12, 13
    FR = [16, 36]
    ACC = 64
    VC = 14
    VST = 15
    A.c("compute wave: tw=w&1, hw=w>>1")
    A("s_and_b32 s38, s32, 1")
    A("s_lshr_b32 s39, s32, 1")
    A("v_and_b32 v3, 31, v2")
    A("v_lshrrev_b32 v1, 5, v2")
    A("v_bfe_u32 v56, v2, 1, 3")
    A("v_xor_b32 v56, v56, v1")
    A("v_lshlrev_b32 v56, 4, v56")
    A("v_lshl_add_u32 v56, v3, 7, v56")
    A("s_lshl_b32 s40, s38, 13")
    A("v_add_u32 v%d, s40, v56" % XA)
    for ks in range(1, 4):
        A("v_xor_b32 v%d, %d, v%d" % (XA + ks, ks * 32, XA))
    for ks in range(4):
        A("v_add_u32 v%d, %d, v%d" % (XB + ks, 2 * K1_SLOT, XA + ks))
    A("v_bfe_u32 v56, v2, 2, 2")
    A("v_lshlrev_b32 v56, 1, v56")
    A("v_add_u32 v56, v56, v1")
    A("v_mul_u32_u24 v56, 672, v56")
    A("v_bfe_u32 v57, v2, 4, 1")
    A("v_lshl_add_u32 v56, v57, 5, v56")
    A("v_and_b32 v57, 3, v2")
    A("v_lshl_add_u32 v56, v57, 3, v56")
    A("s_mul_i32 s40, s39, 56")
    A("s_add_u32 s40, s40, %d" % K1_XB)
    A("v_add_u32 v%d, s40, v56" % WA)
    A("v_add_u32 v%d, %d, v%d" % (WB, 2 * K1_SLOT, WA))
    A("v_lshlrev_b32 v%d, 4, v2" % VST)
    A("v_cmp_gt_u32 s[42:43], 32, v2")
    A("v_cmp_gt_u32 s[44:45], 28, v3")
    A("v_cmp_eq_u32 vcc, 28, v3")
    A("v_mov_b32 v56, 0x3f803f80")
    A("s_nop 1")
    A("v_cndmask_b32 v%d, 0, v56, vcc" % VC)
    A("s_lshl_b32 s46, s36, 1")
    A("s_add_u32 s46, s46, s39")
    A("s_lshl_b32 s47, s35, 2")
    A("s_lshl_b32 s48, s38, 1")
    A("s_add_u32 s47, s47, s48")
    A("s_lshl_b32 s48, s46, 17")
    A("s_lshl_b32 s49, s47, 11")
    A("s_add_u32 s48, s48, s49")
    A("s_lshl_b32 s49, s48, 1")
    A("s_add_u32 s49, s49, %d" % WS_KV)
    A("s_add_u32 s50, s49, 4096")
    A("s_mov_b32 s51, %s" % f32(QSCALE))

    def reads(step):
        c, ks = divmod(step, 4)
        slot = c & 3
        fb = FR[step & 1]
        xr = (XA if slot < 2 else XB) + ks
        wr = WA if slot < 2 else WB
        so = (slot & 1) * K1_SLOT
        out = []
        out.append("ds_read_b128 %s, v%d offset:%d" % (vr(fb, 4), xr, so))
        for t in range(2):
            out.append("ds_read_b64_tr_b16 %s, v%d offset:%d" % (vr(fb + 8 + 2 * t, 2), wr, so + (16 * ks + t) * 336))
        out.append("ds_read_b128 %s, v%d offset:%d" % (vr(fb + 4, 4), xr, so + 4096))
        for sec in (1, 2):
            for t in range(2):
                out.append("ds_read_b64_tr_b16 %s, v%d offset:%d" % (
                    vr(fb + 8 + 4 * sec + 2 * t, 2), wr, so + (16 * ks + t) * 336 + sec * 112))
        return out

    def mfmas(step):
        fb = FR[step & 1]
        out = []
        for sec in range(3):
            for tt in range(2):
                d = vr(ACC + 16 * (sec * 2 + tt), 16)
                x = vr(fb + 4 * tt, 4)
                w = vr(fb + 8 + 4 * sec, 4)
                c = "0" if step == 0 else d
                if sec < 2:
                    out.append("v_mfma_f32_32x32x16_bf16 %s, %s, %s, %s" % (d, w, x, c))
                else:
                    out.append("v_mfma_f32_32x32x16_bf16 %s, %s, %s, %s" % (d, x, w, c))
        return out

    A("s_barrier")
    ts_mid(A)
    for r in reads(0):
        A(r)
    for step in range(28):
        m = mfmas(step)
        A("s_waitcnt lgkmcnt(0)")
        A(m[0])
        if step + 1 < 28:
            if (step + 1) % 4 == 0:
                A("s_barrier")
            rd = reads(step + 1)
            A(rd[0]); A(rd[1]); A(rd[2])
            A(m[1])
            A(rd[3]); A(rd[4]); A(rd[5])
            A(m[2])
            A(rd[6]); A(rd[7])
            for x in m[3:]:
                A(x)
        else:
            for x in m[1:]:
                A(x)
    A("s_waitcnt lgkmcnt(0)")
    A("s_nop 7")
    PK = [16, 24, 32, 40, 48, 56]
    for sec in range(3):
        for tt in range(2):
            i = sec * 2 + tt
            a = ACC + 16 * i
            p = PK[i]
            if sec == 0:
                for r in range(16):
                    A("v_mul_f32 v%d, s51, v%d" % (a + r, a + r))
            for r in range(8):
                A("v_cvt_pk_bf16_f32 v%d, v%d, v%d" % (p + r, a + 2 * r, a + 2 * r + 1))
            if sec < 2:
                A("v_cndmask_b32 v%d, 0, v%d, s[42:43]" % (p + 6, p + 6))
                A("v_cndmask_b32 v%d, 0, v%d, s[42:43]" % (p + 7, p + 7))
            else:
                for r in range(8):
                    A("v_cndmask_b32 v%d, v%d, v%d, s[44:45]" % (p + r, VC, p + r))
            for s in range(2):
                if sec == 0:
                    so, imm = 48, tt * 2048 + s * 1024
                else:
                    so, imm = 49 + tt, (sec - 1) * 2048 + s * 1024
                A("buffer_store_dwordx4 %s, v%d, s[12:15], s%d offen offset:%d" % (vr(p + 4 * s, 4), VST, so, imm))
    ts_end(A, 0, 4, 32)
    A("s_endpgm")

    A.label(Lload)
    A("s_sub_u32 s38, s32, 4")
    VX = 4
    VW = 5
    A("v_lshrrev_b32 v12, 4, v2")
    A("s_and_b32 s39, s38, 1")
    A("s_lshl_b32 s39, s39, 2")
    A("v_xor_b32 v12, s39, v12")
    A("v_and_b32 v13, 7, v2")
    A("v_xor_b32 v12, v12, v13")
    A("v_lshlrev_b32 v12, 4, v12")
    A("v_lshrrev_b32 v13, 3, v2")
    A("s_lshl_b32 s39, s35, 7")
    A("s_lshl_b32 s40, s38, 3")
    A("s_add_u32 s39, s39, s40")
    A("v_add_u32 v13, s39, v13")
    A("v_mul_u32_u24 v13, 896, v13")
    A("v_add_u32 v%d, v12, v13" % VX)
    A("s_lshl_b32 s40, s38, 6")
    A("v_add_u32 v12, s40, v2")
    for m in range(6):
        A("v_add_u32 v13, %d, v12" % (m * 256))
        A("v_mul_u32_u24 v14, 3121, v13")
        A("v_lshrrev_b32 v14, 16, v14")
        A("v_mul_u32_u24 v15, 21, v14")
        A("v_sub_u32 v15, v13, v15")
        A("v_mul_u32_u24 v16, 37, v15")
        A("v_lshrrev_b32 v16, 8, v16")
        A("v_mul_u32_u24 v16, %d, v16" % (896 - 112))
        A("v_lshl_add_u32 v16, v15, 4, v16")
        A("v_and_b32 v15, 3, v14")
        A("v_lshlrev_b32 v15, 2, v15")
        A("v_bfe_u32 v17, v14, 2, 2")
        A("v_and_b32 v14, -16, v14")
        A("v_or3_b32 v14, v14, v15, v17")
        A("v_mul_u32_u24 v14, 2688, v14")
        A("v_add_u32 v%d, v14, v16" % (VW + m))
    A("s_and_b32 s41, s36, 7")
    A("s_mul_i32 s41, s41, 112")
    A("s_lshl_b32 s42, s38, 10")
    A("s_waitcnt lgkmcnt(0)")
    A("s_mov_b32 s4, s20")
    A("s_mov_b32 s5, s21")
    A("s_mov_b32 s6, %d" % (2048 * 896))
    A("s_mov_b32 s7, 0x00020000")
    A("s_cmp_ge_u32 s36, 8")
    A("s_cselect_b32 s8, s28, s22")
    A("s_cselect_b32 s9, s29, s23")
    A("s_mov_b32 s10, %d" % (448 * 2688))
    A("s_mov_b32 s11, 0x00020000")
    A("s_mov_b32 s18, 896")
    A("s_mov_b32 s19, 0x00020000")
    Lextra = "Lk1_loader_x"
    A("s_cmp_eq_u32 s38, 0")
    A("s_cbranch_scc1 %s" % Lextra)

    def loader_body(nw):
        def issue(c):
            slot = c & 3
            for m in range(4):
                A("s_add_u32 m0, s42, %d" % (slot * K1_SLOT + m * 4096))
                A("s_mov_b32 s43, %d" % (m * 28672 + c * 128))
                A("buffer_load_dwordx4 v%d, s[4:7], s43 offen lds" % VX)
            A("s_add_u32 s44, s41, %d" % (c * 64 * 2688))
            for m in range(nw):
                A("s_add_u32 m0, s42, %d" % (slot * K1_SLOT + K1_XB + m * 4096))
                A("s_nop 0")
                A("buffer_load_dwordx4 v%d, s[8:11], s44 offen lds" % (VW + m))
        per = 4 + nw
        for c in range(4):
            issue(c)
        issued = 4
        extra = 0
        for c in range(7):
            newer = (issued - 1 - c) * per + extra
            A("s_waitcnt vmcnt(%d)" % newer)
            A("s_barrier")
            if c == 6:
                ts_mid(A)
            if 1 <= c <= 3:
                issue(c + 3)
                issued += 1
            if c == 3:
                extra = side_loads()
        side_finish()

    def side_loads():
        A.c("gate loads")
        A("v_lshlrev_b32 v20, 4, v2")
        A("v_cmp_gt_u32 vcc, 56, v2")
        A("v_mov_b32 v21, 0x80000000")
        A("s_lshl_b32 s46, s35, 7")
        A("s_lshl_b32 s47, s36, 3")
        A("s_add_u32 s46, s46, s47")
        A("s_lshl_b32 s47, s38, 1")
        A("s_add_u32 s46, s46, s47")
        A("v_cndmask_b32 v20, v21, v20, vcc")
        A("s_mul_i32 s47, s46, 896")
        A("buffer_load_dwordx4 v[24:27], v20, s[16:19], 0 offen")
        A("buffer_load_dwordx4 v[28:31], v20, s[4:7], s47 offen")
        A("buffer_load_dwordx4 v[32:35], v20, s[4:7], s47 offen offset:896")
        A.c("Wo gather: f = wg*4+lw ; s=f&1 hb=(f>>1)&31 nt=f>>6")
        A("s_lshl_b32 s48, s2, 2")
        A("s_add_u32 s48, s48, s38")
        A("s_bitcmp1_b32 s48, 5")
        A("s_cselect_b32 s52, s30, s24")
        A("s_cselect_b32 s53, s31, s25")
        A("s_mov_b32 s54, %d" % (448 * 896))
        A("s_mov_b32 s55, 0x00020000")
        A("s_bfe_u32 s49, s48, 0x40001")
        A("s_mul_i32 s49, s49, 28")
        A("s_and_b32 s50, s48, 1")
        A("s_lshl_b32 s51, s50, 4")
        A("s_add_u32 s49, s49, s51")
        A("s_mul_i32 s49, s49, 896")
        A("s_and_b32 s51, s48, -64")
        A("s_add_u32 s49, s49, s51")
        A("s_cmp_ge_u32 s48, 896")
        A("s_cselect_b32 s49, 0, s49")
        A("v_lshrrev_b32 v22, 5, v2")
        A("v_mul_u32_u24 v22, %d, v22" % (4 * 896))
        A("v_and_b32 v23, 31, v2")
        A("v_lshl_add_u32 v22, v23, 1, v22")
        A("v_add_u32 v23, %d, v22" % (8 * 896))
        A("s_lshl_b32 s50, s50, 5")
        A("s_sub_u32 s50, 64, s50")
        A("v_cmp_gt_u32 vcc, s50, v2")
        A("s_nop 1")
        A("v_cndmask_b32 v23, v21, v23, vcc")
        for j in range(8):
            A("buffer_load_ushort v%d, v%d, s[52:55], s49 offen offset:%d" % (36 + j, 22 + (j >> 2), (j & 3) * 896))
        return 11

    def side_finish():
        A("s_waitcnt vmcnt(8)")
        A("v_mov_b32 v44, 0")
        A("v_mov_b32 v45, 0")
        for k in range(4):
            A("v_dot2_f32_bf16 v44, v%d, v%d, v44" % (24 + k, 28 + k))
            A("v_dot2_f32_bf16 v45, v%d, v%d, v45" % (24 + k, 32 + k))
        A("s_nop 3")
        for dpp in ("row_shr:1", "row_shr:2", "row_shr:4", "row_shr:8", "row_bcast:15 row_mask:0xa", "row_bcast:31 row_mask:0xc"):
            A("v_add_f32_dpp v44, v44, v44 %s" % dpp)
            A("v_add_f32_dpp v45, v45, v45 %s" % dpp)
            A("s_nop 1")
        A("v_mul_f32 v44, %s, v44" % f32(-math.log2(math.e)))
        A("v_mul_f32 v45, %s, v45" % f32(-math.log2(math.e)))
        A("v_exp_f32 v44, v44")
        A("v_exp_f32 v45, v45")
        A("s_nop 0")
        A("v_add_f32 v44, 1.0, v44")
        A("v_add_f32 v45, 1.0, v45")
        A("v_rcp_f32 v44, v44")
        A("v_rcp_f32 v45, v45")
        A("v_cmp_eq_u32 vcc, 63, v2")
        A("v_mov_b32 v46, 0")
        A("s_lshl_b32 s46, s46, 2")
        A("s_add_u32 s46, s46, %d" % WS_G)
        A("v_cndmask_b32 v46, v21, v46, vcc")
        A("buffer_store_dwordx2 v[44:45], v46, s[12:15], s46 offen")
        A("s_waitcnt vmcnt(1)")
        for k in range(4):
            A("v_lshl_or_b32 v%d, v%d, 16, v%d" % (48 + k, 37 + 2 * k, 36 + 2 * k))
        A("v_lshlrev_b32 v20, 4, v2")
        A("s_lshl_b32 s49, s48, 10")
        A("s_add_u32 s49, s49, %d" % WS_WO)
        Lsk = A.newlabel("k1sk")
        A("s_cmp_ge_u32 s48, 896")
        A("s_cbranch_scc1 %s" % Lsk)
        A("buffer_store_dwordx4 v[48:51], v20, s[12:15], s49 offen")
        A.label(Lsk)
        ts_end(A, 0, 4, 32)
        A("s_endpgm")

    loader_body(5)
    A.label(Lextra)
    loader_body(6)
    A.label(Lend)
    A("s_endpgm")
    return name, descriptor(name, 160, 160), "grid=(256,1,1) block=(512,1,1) lds=%d" % (4 * K1_SLOT)


def gen_k2(A):
    name = "attn_kernel"
    kernel_begin(A, name)
    Lend = "Lk2_end"
    Q, NM, S, O, P = 8, 16, [32, 48], 64, 80
    K0, K1, V0, V1, E = 88, 92, 96, 100, 104
    VCUR, VNXT, VDMA, VL16, VG = 2, 3, 4, 5, 6
    ts_begin(A)
    A("s_cmp_ge_u32 s2, 256")
    A("s_cbranch_scc1 %s" % Lend)
    A("s_load_dwordx2 s[12:13], s[0:1], 72")
    A("v_lshrrev_b32 v1, 6, v0")
    A("v_and_b32 v7, 63, v0")
    A("v_lshlrev_b32 v%d, 4, v7" % VL16)
    A("v_readfirstlane_b32 s32, v1")
    A("s_and_b32 s33, s2, 7")
    A("s_lshl_b32 s33, s33, 2")
    A("s_bfe_u32 s34, s2, 0x20003")
    A("s_add_u32 s33, s33, s34")
    A("s_lshr_b32 s34, s2, 5")
    A("s_lshl_b32 s34, s34, 3")
    A("s_add_u32 s34, s34, s32")
    A("s_lshl_b32 s35, s32, 12")
    A("v_add_u32 v%d, s35, v%d" % (VDMA, VL16))
    A("v_mov_b32 v%d, v%d" % (VCUR, VL16))
    A("v_add_u32 v%d, 0x8000, v%d" % (VNXT, VL16))
    A("s_lshl_b32 s36, s33, 18")
    A("s_add_u32 s36, s36, %d" % WS_KV)
    A("s_mov_b32 s14, %d" % WS_USED)
    A("s_mov_b32 s15, 0x00020000")
    A("s_mov_b32 s6, 0x40000")
    A("s_mov_b32 s7, 0x00020000")
    A("s_lshl_b32 s37, s33, 17")
    A("s_lshl_b32 s38, s34, 11")
    A("s_add_u32 s37, s37, s38")
    A("s_lshl_b32 s38, s34, 7")
    A("s_add_u32 s38, s38, %d" % WS_G)
    A("v_and_b32 v1, 31, v7")
    A("v_lshlrev_b32 v1, 2, v1")
    A("s_waitcnt lgkmcnt(0)")
    A("s_add_u32 s4, s12, s36")
    A("s_addc_u32 s5, s13, 0")

    def dma(soff_sgpr, m0expr):
        A(m0expr)
        A("s_nop 0")
        for p in range(4):
            A("buffer_load_dwordx4 v%d, s[4:7], %s offen offset:%d lds" % (VDMA, soff_sgpr, p * 1024))

    A("buffer_load_dwordx4 %s, v%d, s[12:15], s37 offen" % (vr(Q, 4), VL16))
    A("buffer_load_dwordx4 %s, v%d, s[12:15], s37 offen offset:1024" % (vr(Q + 4, 4), VL16))
    dma("0", "s_mov_b32 m0, s35")
    A("buffer_load_dword v%d, v1, s[12:15], s38 offen" % VG)
    A("s_mov_b32 s40, 0x8000")
    dma("s40", "s_add_u32 m0, s35, 0x8000")
    A("s_mov_b32 s40, 0x10000")
    dma("s40", "s_add_u32 m0, s35, 0x10000")
    A("s_mov_b32 s40, 0x18000")
    A("s_mov_b32 s41, 8")
    for r in range(16):
        A("v_mov_b32 v%d, 0" % (O + r))
    A("s_waitcnt vmcnt(9)")
    A("s_barrier")
    ts_mid(A)

    def rd(dst, base, tile, part):
        A("ds_read_b128 %s, v%d offset:%d" % (vr(dst, 4), base, tile * 4096 + part * 1024))

    def mf(d, a, b, c):
        A("v_mfma_f32_32x32x16_bf16 %s, %s, %s, %s" % (vr(d, 16), vr(a, 4), vr(b, 4), c))

    rd(K0, VCUR, 0, 0)
    rd(K1, VCUR, 0, 1)
    rd(V0, VCUR, 0, 2)
    A("s_waitcnt lgkmcnt(1)")
    mf(S[1], K0, Q, "0")
    mf(S[1], K1, Q + 4, vr(S[1], 16))
    A("s_nop 11")
    s = S[1]
    A("v_max3_f32 v%d, v%d, v%d, v%d" % (E, s, s + 1, s + 2))
    A("v_max3_f32 v%d, v%d, v%d, v%d" % (E + 1, s + 3, s + 4, s + 5))
    A("v_max3_f32 v%d, v%d, v%d, v%d" % (E + 2, s + 6, s + 7, s + 8))
    A("v_max3_f32 v%d, v%d, v%d, v%d" % (E + 3, s + 9, s + 10, s + 11))
    A("v_max3_f32 v%d, v%d, v%d, v%d" % (E, E, s + 12, s + 13))
    A("v_max3_f32 v%d, v%d, v%d, v%d" % (E + 1, E + 1, s + 14, s + 15))
    A("v_max3_f32 v%d, v%d, v%d, v%d" % (E, E, E + 2, E + 3))
    A("v_max_f32 v%d, v%d, v%d" % (E, E, E + 1))
    A("v_mov_b32 v%d, v%d" % (E + 1, E))
    A("s_nop 1")
    A("v_permlane32_swap_b32 v%d, v%d" % (E, E + 1))
    A("s_nop 1")
    A("v_max_f32 v%d, v%d, v%d" % (E, E, E + 1))
    for r in range(16):
        A("v_sub_f32 v%d, 0, v%d" % (NM + r, E))
    for r in range(4):
        A("v_mov_b32 v%d, 0" % (P + 4 + r))
        A("v_mov_b32 v%d, 0" % (V1 + r))
    A("v_mov_b32 v%d, 0" % (E + 2))
    A("v_mov_b32 v%d, 0" % (E + 3))
    mf(S[0], K0, Q, vr(NM, 16))
    mf(S[0], K1, Q + 4, vr(S[0], 16))
    rd(K0, VCUR, 1, 0)
    rd(K1, VCUR, 1, 1)
    A("s_waitcnt lgkmcnt(0)")
    A("s_nop 7")

    Lloop = "Lk2_loop"
    A.raw(".p2align 6")
    A.label(Lloop)
    for i in range(8):
        sc = S[i & 1]
        sn = S[(i + 1) & 1]

        def grp(g, pprev):
            A("v_cvt_pk_bf16_f32 v%d, v%d, v%d" % (pprev, E + 2, E + 3))
            for k in range(4):
                A("v_exp_f32 v%d, v%d" % (E + k, sc + 4 * g + k))
            A("v_cvt_pk_bf16_f32 v%d, v%d, v%d" % (P + 2 * g, E, E + 1))

        if i == 6:
            A("s_waitcnt vmcnt(4)")
            A("s_barrier")
        kb, kt = (VCUR, i + 2) if i + 2 < 8 else (VNXT, i + 2 - 8)
        vb, vt = (VCUR, i + 1) if i + 1 < 8 else (VNXT, 0)
        A("s_waitcnt lgkmcnt(3)")
        mf(sn, K0, Q, vr(NM, 16))
        rd(K0, kb, kt, 0)
        grp(0, P + 7)
        A("s_waitcnt lgkmcnt(3)")
        mf(sn, K1, Q + 4, vr(sn, 16))
        rd(K1, kb, kt, 1)
        if i == 6:
            A("s_and_b32 s42, s40, 0x18000")
            A("s_add_u32 m0, s42, s35")
        grp(1, P + 1)
        if i == 6:
            for p in range(4):
                A("buffer_load_dwordx4 v%d, s[4:7], s40 offen offset:%d lds" % (VDMA, p * 1024))
            A("s_add_u32 s40, s40, 0x8000")
        A("s_waitcnt lgkmcnt(3)")
        mf(O, V1, P + 4, vr(O, 16))
        rd(V1, VCUR, i, 3)
        grp(2, P + 3)
        A("s_waitcnt lgkmcnt(3)")
        mf(O, V0, P, vr(O, 16))
        rd(V0, vb, vt, 2)
        if i == 7:
            A("v_mov_b32 v%d, v%d" % (VCUR, VNXT))
            A("v_add_u32 v%d, 0x8000, v%d" % (VNXT, VNXT))
            A("v_and_b32 v%d, 0x1ffff, v%d" % (VNXT, VNXT))
            A("s_sub_u32 s41, s41, 1")
            A("s_cmp_lg_u32 s41, 0")
        grp(3, P + 5)
    A("s_cbranch_scc1 %s" % Lloop)
    A("v_cvt_pk_bf16_f32 v%d, v%d, v%d" % (P + 7, E + 2, E + 3))
    A("s_waitcnt lgkmcnt(0)")
    A("s_nop 0")
    mf(O, V1, P + 4, vr(O, 16))
    A("s_nop 11")
    Lepi = "Lk2_epi"
    Lfb = "Lk2_fallback"
    A("v_max3_f32 v%d, |v%d|, |v%d|, |v%d|" % (E, O, O + 1, O + 2))
    A("v_max3_f32 v%d, |v%d|, |v%d|, |v%d|" % (E + 1, O + 3, O + 4, O + 5))
    A("v_max3_f32 v%d, |v%d|, |v%d|, |v%d|" % (E + 2, O + 6, O + 7, O + 8))
    A("v_max3_f32 v%d, |v%d|, |v%d|, |v%d|" % (E + 3, O + 9, O + 10, O + 11))
    A("v_max3_f32 v%d, v%d, |v%d|, |v%d|" % (E, E, O + 12, O + 13))
    A("v_max3_f32 v%d, v%d, |v%d|, |v%d|" % (E + 1, E + 1, O + 14, O + 15))
    A("v_max3_f32 v%d, v%d, v%d, v%d" % (E, E, E + 2, E + 3))
    A("v_max_f32 v%d, v%d, v%d" % (E, E, E + 1))
    A("v_add_f32 v%d, v%d, v%d" % (E + 1, O, O + 1))
    for r in range(2, 16):
        A("v_add_f32 v%d, v%d, v%d" % (E + 1, E + 1, O + r))
    A("v_mov_b32 v%d, %s" % (E + 2, f32(2.0 ** 100)))
    A("v_cmp_nle_f32 vcc, v%d, v%d" % (E, E + 2))
    A("v_cmp_u_f32 s[44:45], v%d, v%d" % (E + 1, E + 1))
    A("s_nop 3")
    A("s_or_b64 vcc, vcc, s[44:45]")
    A("s_cbranch_vccnz %s" % Lfb)
    A.label(Lepi)
    A("s_waitcnt vmcnt(0)")
    A("v_mov_b32 v%d, v%d" % (E, O + 12))
    A("v_mov_b32 v%d, v%d" % (E + 1, O + 12))
    A("s_cmp_ge_u32 s33, 16")
    A("s_cselect_b32 s44, -1.0, 1.0")
    A("s_cselect_b32 s45, 1.0, 0")
    A("v_permlane32_swap_b32 v%d, v%d" % (E, E + 1))
    A("v_mov_b32 v%d, s45" % (E + 2))
    A("v_fma_f32 v%d, s44, v%d, v%d" % (E + 2, VG, E + 2))
    A("v_rcp_f32 v%d, v%d" % (E + 1, E + 1))
    A("v_cmp_gt_u32 vcc, 32, v7")
    A("s_lshl_b32 s46, s34, 16")
    A("s_lshl_b32 s47, s33, 11")
    A("v_mul_f32 v%d, v%d, v%d" % (E + 1, E + 1, E + 2))
    A("s_add_u32 s46, s46, s47")
    A("s_add_u32 s46, s46, %d" % WS_O)
    for r in range(16):
        A("v_mul_f32 v%d, v%d, v%d" % (O + r, O + r, E + 1))
    for r in range(8):
        A("v_cvt_pk_bf16_f32 v%d, v%d, v%d" % (P + r, O + 2 * r, O + 2 * r + 1))
    A("v_cndmask_b32 v%d, 0, v%d, vcc" % (P + 6, P + 6))
    A("v_cndmask_b32 v%d, 0, v%d, vcc" % (P + 7, P + 7))
    A("buffer_store_dwordx4 %s, v%d, s[12:15], s46 offen" % (vr(P, 4), VL16))
    A("buffer_store_dwordx4 %s, v%d, s[12:15], s46 offen offset:1024" % (vr(P + 4, 4), VL16))
    ts_end(A, 1, 8, 32)
    A.label(Lend)
    A("s_endpgm")

    A.label(Lfb)
    A("s_waitcnt vmcnt(0)")
    A("v_mov_b32 v%d, 0xff800000" % E)
    A("s_mov_b32 s42, 0")
    A.label("Lk2_fb1")
    A("buffer_load_dwordx4 %s, v%d, s[4:7], s42 offen" % (vr(K0, 4), VL16))
    A("buffer_load_dwordx4 %s, v%d, s[4:7], s42 offen offset:1024" % (vr(K1, 4), VL16))
    A("s_waitcnt vmcnt(0)")
    mf(S[0], K0, Q, "0")
    mf(S[0], K1, Q + 4, vr(S[0], 16))
    A("s_nop 11")
    for r in range(0, 16, 2):
        A("v_max3_f32 v%d, v%d, v%d, v%d" % (E, E, S[0] + r, S[0] + r + 1))
    A("s_add_u32 s42, s42, 4096")
    A("s_cmp_lt_u32 s42, 0x40000")
    A("s_cbranch_scc1 Lk2_fb1")
    A("v_mov_b32 v%d, v%d" % (E + 1, E))
    A("s_nop 1")
    A("v_permlane32_swap_b32 v%d, v%d" % (E, E + 1))
    A("s_nop 1")
    A("v_max_f32 v%d, v%d, v%d" % (E, E, E + 1))
    for r in range(16):
        A("v_sub_f32 v%d, 0, v%d" % (NM + r, E))
        A("v_mov_b32 v%d, 0" % (O + r))
    A("s_mov_b32 s42, 0")
    A.label("Lk2_fb2")
    for k, reg in enumerate((K0, K1, V0, V1)):
        A("buffer_load_dwordx4 %s, v%d, s[4:7], s42 offen offset:%d" % (vr(reg, 4), VL16, k * 1024))
    A("s_waitcnt vmcnt(0)")
    mf(S[0], K0, Q, vr(NM, 16))
    mf(S[0], K1, Q + 4, vr(S[0], 16))
    A("s_nop 11")
    for r in range(16):
        A("v_exp_f32 v%d, v%d" % (S[0] + r, S[0] + r))
    A("s_nop 0")
    for r in range(8):
        A("v_cvt_pk_bf16_f32 v%d, v%d, v%d" % (P + r, S[0] + 2 * r, S[0] + 2 * r + 1))
    A("s_nop 1")
    mf(O, V0, P, vr(O, 16))
    mf(O, V1, P + 4, vr(O, 16))
    A("s_add_u32 s42, s42, 4096")
    A("s_cmp_lt_u32 s42, 0x40000")
    A("s_cbranch_scc1 Lk2_fb2")
    A("s_nop 11")
    A("s_branch %s" % Lepi)
    return name, descriptor(name, 112, 112), "grid=(256,1,1) block=(512,1,1) lds=131072"


def gen_k3(A):
    name = "oproj_kernel"
    kernel_begin(A, name)
    Lend = "Lk3_end"
    ACC = 16
    VO = 4
    ts_begin(A)
    A("s_cmp_ge_u32 s2, 224")
    A("s_cbranch_scc1 %s" % Lend)
    A("s_load_dwordx2 s[12:13], s[0:1], 72")
    A("s_load_dwordx2 s[8:9], s[0:1], 56")
    A("v_lshrrev_b32 v1, 6, v0")
    A("v_and_b32 v2, 63, v0")
    A("v_lshlrev_b32 v3, 4, v2")
    A("v_readfirstlane_b32 s32, v1")
    A("s_and_b32 s33, s2, 7")
    A("s_lshl_b32 s33, s33, 2")
    A("s_bfe_u32 s34, s2, 0x20003")
    A("s_add_u32 s33, s33, s34")
    A("s_lshr_b32 s34, s2, 5")
    A("s_lshl_b32 s35, s32, 14")
    A("v_add_u32 v%d, s35, v3" % VO)
    for g in range(1, 4):
        A("v_add_u32 v%d, %d, v%d" % (VO + g, 4096 * g, VO))
    A("s_lshl_b32 s36, s33, 17")
    A("s_add_u32 s36, s36, %d" % WS_O)
    A("s_add_u32 s37, s36, 65536")
    A("s_lshl_b32 s38, s34, 17")
    A("s_add_u32 s38, s38, %d" % WS_WO)
    A("s_add_u32 s39, s38, 65536")
    A("s_mov_b32 s14, %d" % WS_USED)
    A("s_mov_b32 s15, 0x00020000")
    A("s_mov_b32 s10, %d" % (2048 * 896))
    A("s_mov_b32 s11, 0x00020000")
    A("s_waitcnt lgkmcnt(0)")

    def loads(k):
        for j, so in enumerate((36, 38, 37, 39)):
            A("buffer_load_dwordx4 %s, v%d, s[12:15], s%d offen offset:%d" % (
                ar(16 * k + 4 * j, 4), VO + (k >> 2), so, (k & 3) * 1024))

    for k in range(15):
        loads(k)
    for k in range(16):
        A("s_waitcnt vmcnt(%d)" % (56 if k == 0 else 4 * (15 - k)))
        for nt in range(2):
            for tt in range(2):
                d = vr(ACC + 16 * (nt * 2 + tt), 16)
                A("v_mfma_f32_32x32x16_bf16 %s, %s, %s, %s" % (
                    d, ar(16 * k + 4 + 8 * nt, 4), ar(16 * k + 8 * tt, 4), "0" if k == 0 else d))
        if k == 0:
            loads(15)
    ts_mid(A)
    A("s_lshl_b32 s40, s32, 12")
    A("v_add_u32 v8, s40, v3")
    A("s_lshl_b32 s41, s32, 14")
    A("v_add_u32 v9, s41, v3")
    A("s_nop 7")
    for t in range(4):
        L = A.newlabel("k3w")
        A("s_cmp_eq_u32 s32, %d" % t)
        A("s_cbranch_scc1 %s" % L)
        if t == 3:
            A("s_nop 4")
        for q in range(4):
            A("ds_write_b128 v8, %s offset:%d" % (vr(ACC + 16 * t + 4 * q, 4), t * 16384 + q * 1024))
        A.label(L)
    for t in range(4):
        L = A.newlabel("k3m")
        A("s_cmp_lg_u32 s32, %d" % t)
        A("s_cbranch_scc1 %s" % L)
        A("s_nop 4")
        for r in range(16):
            A("v_mov_b32 v%d, v%d" % (80 + r, ACC + 16 * t + r))
        A.label(L)
    A("s_waitcnt lgkmcnt(0)")
    A("s_barrier")
    for j in range(1, 4):
        A("s_xor_b32 s42, s32, %d" % j)
        A("s_lshl_b32 s42, s42, 12")
        A("v_add_u32 v10, s42, v9")
        for q in range(4):
            A("ds_read_b128 %s, v10 offset:%d" % (vr(ACC + 16 * (j - 1) + 4 * q, 4), q * 1024))
    A("v_and_b32 v11, 31, v2")
    A("v_mul_u32_u24 v11, 896, v11")
    A("v_lshrrev_b32 v12, 5, v2")
    A("v_lshl_add_u32 v11, v12, 4, v11")
    A("s_lshl_b32 s43, s33, 1")
    A("s_and_b32 s44, s32, 1")
    A("s_add_u32 s43, s43, s44")
    A("s_mul_i32 s43, s43, %d" % (32 * 896))
    A("s_lshl_b32 s44, s34, 7")
    A("s_add_u32 s43, s43, s44")
    A("s_lshr_b32 s44, s32, 1")
    A("s_lshl_b32 s44, s44, 6")
    A("s_add_u32 s43, s43, s44")
    for j in range(3):
        A("s_waitcnt lgkmcnt(%d)" % (4 * (2 - j)))
        for r in range(16):
            A("v_add_f32 v%d, v%d, v%d" % (80 + r, 80 + r, ACC + 16 * j + r))
    for r in range(8):
        A("v_cvt_pk_bf16_f32 v%d, v%d, v%d" % (16 + r, 80 + 2 * r, 80 + 2 * r + 1))
    A("s_nop 1")
    A("v_permlane32_swap_b32 v16, v18")
    A("v_permlane32_swap_b32 v17, v19")
    A("v_permlane32_swap_b32 v20, v22")
    A("v_permlane32_swap_b32 v21, v23")
    A("s_nop 1")
    A("buffer_store_dwordx4 v[16:19], v11, s[8:11], s43 offen")
    A("buffer_store_dwordx4 v[20:23], v11, s[8:11], s43 offen offset:32")
    ts_end(A, 2, 4, 32)
    A.label(Lend)
    A("s_endpgm")
    return name, descriptor(name, 96 + 256, 96), "grid=(224,1,1) block=(256,1,1) lds=65536"


def main(out, timing=False):
    global TIMING
    TIMING = timing
    A = Asm()
    ks = [gen_k1(A), gen_k2(A), gen_k3(A)]
    head = [
        "; gated dual-branch MHA block: QKV projection -> attention -> output projection",
    ]
    for n, d, l in ks:
        head.append("; @launch kernel=%s %s" % (n, l))
    head.append('.amdgcn_target "amdgcn-amd-amdhsa--gfx950"')
    head.append(".text")
    txt = "\n".join(head) + "\n" + A.text() + '.section .rodata,"a"\n' + "\n".join(d for n, d, l in ks) + "\n"
    open(out, "w").write(txt)


if __name__ == "__main__":
    out = sys.argv[1] if len(sys.argv) > 1 else "cdna_kernels/%s.s" % NAME
    main(out, timing=("dbg" if "--dbg" in sys.argv else ("--ts" in sys.argv)))
```

```python
import sys, math
sys.path.insert(0, "gen")
from gen import Asm, vr, sr, f32, kernel_begin, descriptor

NAME = "gated_mix__softmax_full_mha__mha_block__prompt"
LOG2E = math.log2(math.e)
QSCALE = (28.0 ** -0.5) * LOG2E

WS_KV = 0
WS_O = 8 << 20
WS_FKV = 12 << 20
WS_FO = (12 << 20) + 65536
WS_USED = 16 << 20
WS_TS = 64 << 20

LA, LC, LD, LE, LB = 0, 32768, 65536, 98304, 131072
LWK = 65536
WSEC = 28672
XSLOT = [LA, LB, LC]
RING = [LA, LC, LD]
WOREG = [LE, LB, LD, LC]

SX, SW, SWS, SG, SWOA, SWOB, SOUT, SDBG = 4, 8, 12, 16, 20, 24, 28, 32
sW, sHB, sQB, sC, sXB, sWB, sM4, sMW = 56, 57, 58, 59, 60, 61, 62, 63
sT0, sT1, sT2, sT3 = 64, 65, 66, 67
sKVB, sDONE = 68, 69
sLOW, sL24, sFM = 70, 72, 74
sQS = 76
sSPIN, sWOB_, sNB, sTB = 78, 79, 3, 36
sSKW, sFKV, sCQ, sGA, sGB = 37, 38, 39, 40, 41
STS = 80

VL16, VLN = 1, 2
VN, VFA, VFB, VFO, VG = 126, 116, 118, 6, 7
QA, QB, P = 8, 16, 24
S = [32, 48]
O = [64, 80]
K0, K1, V0, V1, E = 96, 100, 104, 108, 112
VKA, VKD = 120, 121
VGT = 122
XF = 128
VXD, VWD, XA, XB, WA, WQ = 8, 12, 16, 20, 13, 14
WF = 80

OPT = dict(ts=False, map="4x8", pf=True)


class LQ:
    def __init__(self, A):
        self.A = A
        self.q = []

    def issue(self, tag, ins):
        self.A(ins)
        self.q.append(tag)

    def need(self, tag):
        if tag not in self.q:
            return
        idx = len(self.q) - 1 - self.q[::-1].index(tag)
        n = len(self.q) - 1 - idx
        self.A("s_waitcnt lgkmcnt(%d)" % min(n, 15))
        self.q = self.q[idx + 1:]

    def drain(self):
        self.A("s_waitcnt lgkmcnt(0)")
        self.q = []


def gen(A):
    name = "fused_kernel"
    kernel_begin(A, name)
    L = LQ(A)
    TS = OPT["ts"]
    tail = []

    def stamp(i):
        if TS:
            A("s_memtime s[96:97]")
            L.drain()
            A("s_mov_b32 s%d, s96" % (STS + i))

    def mf(d, a, b, c):
        A("v_mfma_f32_32x32x16_bf16 %s, %s, %s, %s" % (vr(d, 16), vr(a, 4), vr(b, 4), c))

    Lend = "Lend"
    A("s_cmp_ge_u32 s2, 256")
    A("s_cbranch_scc1 %s" % Lend)
    A("s_load_dwordx16 s[36:51], s[0:1], 0")
    A("s_load_dwordx4 s[52:55], s[0:1], 64")
    A("s_memrealtime s[98:99]")
    if TS:
        A("s_memtime s[96:97]")
    A("v_lshrrev_b32 v3, 6, v0")
    A("v_and_b32 v%d, 63, v0" % VLN)
    if OPT["map"] == "4x8":
        A("s_and_b32 s%d, s2, 7" % sHB)
        A("s_lshl_b32 s%d, s%d, 2" % (sHB, sHB))
        A("v_readfirstlane_b32 s%d, v3" % sW)
        A("s_bfe_u32 s%d, s2, 0x20003" % sT0)
        A("s_add_u32 s%d, s%d, s%d" % (sHB, sHB, sT0))
        A("s_lshr_b32 s%d, s2, 5" % sQB)
    else:
        A("s_bfe_u32 s%d, s2, 0x20001" % sHB)
        A("s_lshl_b32 s%d, s%d, 3" % (sHB, sHB))
        A("v_readfirstlane_b32 s%d, v3" % sW)
        A("s_bfe_u32 s%d, s2, 0x30003" % sT0)
        A("s_add_u32 s%d, s%d, s%d" % (sHB, sHB, sT0))
        A("s_and_b32 s%d, s2, 1" % sQB)
        A("s_lshl_b32 s%d, s%d, 2" % (sQB, sQB))
        A("s_lshr_b32 s%d, s2, 6" % sT0)
        A("s_add_u32 s%d, s%d, s%d" % (sQB, sQB, sT0))
    A("v_lshrrev_b32 v3, 3, v%d" % VLN)
    A("v_lshrrev_b32 v5, 4, v%d" % VLN)
    A("v_xor_b32 v5, v5, v%d" % VLN)
    A("v_and_b32 v5, 7, v5")
    A("v_mul_u32_u24 v3, 896, v3")
    A("v_lshl_add_u32 v%d, v5, 4, v3" % VXD)
    A("v_xor_b32 v5, 64, v%d" % VXD)
    A("v_add_u32 v%d, 6144, v5" % (VXD + 1))
    A("v_add_u32 v%d, 12288, v%d" % (VXD + 2, VXD))
    A("v_add_u32 v%d, 18432, v5" % (VXD + 3))
    A("v_lshrrev_b32 v3, 2, v%d" % VLN)
    A("v_mul_u32_u24 v3, 2688, v3")
    A("v_and_b32 v5, 3, v%d" % VLN)
    A("v_lshlrev_b32 v5, 4, v5")
    A("v_min_u32 v5, 40, v5")
    A("v_add_u32 v%d, v3, v5" % VWD)
    A("s_lshl_b32 s%d, s%d, 1" % (sC, sHB))
    A("s_add_u32 s%d, s%d, s%d" % (sC, sC, sQB))
    A("s_mul_i32 s%d, s%d, 37" % (sT0, sC))
    A("s_lshr_b32 s%d, s%d, 8" % (sT0, sT0))
    A("s_mul_i32 s%d, s%d, 7" % (sT0, sT0))
    A("s_sub_u32 s%d, s%d, s%d" % (sC, sC, sT0))
    A("s_lshl_b32 s%d, s%d, 3" % (sXB, sQB))
    A("s_add_u32 s%d, s%d, s%d" % (sXB, sXB, sW))
    A("s_lshl_b32 s%d, s%d, 12" % (sKVB, sXB))
    A("s_mul_i32 s%d, s%d, %d" % (sXB, sXB, 32 * 896))
    A("s_lshl_b32 s%d, s%d, 12" % (sM4, sW))
    A("s_and_b32 s%d, s%d, 15" % (sT2, sHB))
    A("s_mul_i32 s%d, s%d, 56" % (sT2, sT2))
    A("s_lshr_b32 s%d, s%d, 2" % (sT0, sW))
    A("s_and_b32 s%d, s%d, 3" % (sT1, sW))
    A("s_mul_i32 s%d, s%d, %d" % (sWB, sT1, 16 * 2688))
    A("s_mul_i32 s%d, s%d, 896" % (sT3, sT0))
    A("s_add_u32 s%d, s%d, s%d" % (sWB, sWB, sT3))
    A("s_add_u32 s%d, s%d, s%d" % (sWB, sWB, sT2))
    A("s_add_u32 s%d, s%d, 896" % (sWB, sWB))
    A("s_mul_i32 s%d, s%d, %d" % (sMW, sT0, WSEC))
    A("s_lshl_b32 s%d, s%d, 10" % (sT1, sT1))
    A("s_add_u32 s%d, s%d, s%d" % (sMW, sMW, sT1))
    A("s_mov_b32 s%d, %d" % (SX + 2, 2048 * 896))
    A("s_mov_b32 s%d, 0x00020000" % (SX + 3))
    A("s_mov_b32 s%d, %d" % (SW + 2, 448 * 2688))
    A("s_mov_b32 s%d, 0x00020000" % (SW + 3))
    A("s_mov_b32 s%d, 256" % (SDBG + 2))
    A("s_mov_b32 s%d, 0x00020000" % (SDBG + 3))
    A("v_mov_b32 v%d, 0" % VFO)
    if OPT["pf"]:
        Lnp = "Lnopf"
        A("s_getpc_b64 s[96:97]" if not TS else "s_getpc_b64 s[94:95]")
        A.label("Lpc")
        A("s_bfe_u32 s%d, s2, 0x20003" % sT0)
        A("s_lshl_b32 s%d, s%d, 13" % (sT0, sT0))
        A("v_lshlrev_b32 v3, 7, v%d" % VLN)
        A("v_add_u32 v3, s%d, v3" % sT0)
        A("v_min_u32 v3, Lcode_end-Lpc-4, v3")
        A("s_cmp_lg_u32 s%d, 7" % sW)
        A("s_cbranch_scc1 %s" % Lnp)
        A("global_load_dword v4, v3, %s" % ("s[96:97]" if not TS else "s[94:95]"))
        A.label(Lnp)
    A("s_cmp_ge_u32 s%d, 16" % sHB)
    A("s_waitcnt lgkmcnt(0)")
    A("s_mov_b32 s%d, s36" % SX)
    A("s_mov_b32 s%d, s37" % (SX + 1))
    A("s_cselect_b32 s%d, s44, s38" % SW)
    A("s_cselect_b32 s%d, s45, s39" % (SW + 1))
    if TS:
        A("s_mov_b32 s%d, s96" % STS)

    def group(i):
        A("s_lshl_b32 s%d, s%d, 7" % (sT0, sC))
        A("s_add_u32 m0, s%d, %d" % (sM4, XSLOT[i % 3]))
        A("s_add_u32 s%d, s%d, s%d" % (sT0, sT0, sXB))
        for g in range(4):
            A("buffer_load_dwordx4 v%d, s[4:7], s%d offen offset:%d lds" % (VXD + g, sT0, g * 1024))
        A("s_mul_i32 s%d, s%d, %d" % (sT1, sC, 64 * 2688))
        A("s_add_u32 m0, s%d, %d" % (sMW, LWK + i * 4096))
        A("s_add_u32 s%d, s%d, s%d" % (sT1, sT1, sWB))
        A("buffer_load_dwordx4 v%d, s[8:11], s%d offen lds" % (VWD, sT1))
        A("s_add_u32 s%d, s%d, 1" % (sC, sC))
        A("s_cmp_eq_u32 s%d, 7" % sC)
        A("s_cselect_b32 s%d, 0, s%d" % (sC, sC))

    A("s_add_u32 s%d, s%d, s%d" % (sT3, sC, sW))
    A("s_mov_b32 s%d, s52" % SDBG)
    A("s_mov_b32 s%d, s53" % (SDBG + 1))
    A("s_or_b32 s%d, s2, s%d" % (sT0, sW))
    A("s_cbranch_scc1 Lnononce")
    A("v_mov_b32 v%d, s98" % VN)
    A("v_mov_b32 v%d, s99" % (VN + 1))
    A("v_or_b32 v%d, 1, v%d" % (VN, VN))
    A("s_mov_b64 exec, 1")
    A("buffer_store_dwordx2 %s, v%d, s[32:35], 0 offen sc1" % (vr(VN, 2), VFO))
    A("s_mov_b64 exec, -1")
    A.label("Lnononce")
    group(0)
    group(1)
    group(2)
    for srd, k, size in ((SWS, 54, WS_USED if not TS else 128 << 20), (SG, 48, 896), (SWOA, 40, 448 * 896),
                         (SWOB, 46, 448 * 896), (SOUT, 50, 2048 * 896)):
        A("s_mov_b32 s%d, s%d" % (srd, k))
        A("s_mov_b32 s%d, s%d" % (srd + 1, k + 1))
        A("s_mov_b32 s%d, %d" % (srd + 2, size))
        A("s_mov_b32 s%d, 0x00020000" % (srd + 3))
    A("s_cmp_ge_u32 s%d, 7" % sT3)
    A("s_cselect_b32 s%d, 7, 0" % sT0)
    A("s_sub_u32 s%d, s%d, s%d" % (sCQ, sT3, sT0))
    A("s_cmp_ge_u32 s%d, 7" % sCQ)
    A("s_cselect_b32 s%d, 7, 0" % sT0)
    A("s_sub_u32 s%d, s%d, s%d" % (sCQ, sCQ, sT0))
    A("s_mul_i32 s%d, s%d, %d" % (sDONE, sCQ, 64 * 2688))
    A("s_add_u32 s%d, s%d, s%d" % (sDONE, sDONE, sT2))
    A("s_lshl_b32 s%d, s%d, 7" % (sCQ, sCQ))
    A("s_lshl_b32 s%d, s%d, 18" % (sT0, sHB))
    A("s_add_u32 s%d, s%d, s%d" % (sKVB, sKVB, sT0))
    A("s_lshl_b32 s%d, s%d, 3" % (sFKV, sHB))
    A("s_add_u32 s%d, s%d, s%d" % (sFKV, sFKV, sW))
    A("s_lshl_b32 s%d, s%d, 7" % (sFKV, sFKV))
    A("s_add_u32 s%d, s%d, %d" % (sFKV, sFKV, WS_FKV))
    A("s_mov_b32 s%d, %s" % (sQS, f32(QSCALE)))
    A("s_mov_b32 s%d, %s" % (sQS + 1, f32(QSCALE)))
    A("s_cmp_ge_u32 s%d, 16" % sHB)
    A("s_cselect_b32 s%d, -1.0, 1.0" % sGA)
    A("s_cselect_b32 s%d, 1.0, 0" % sGB)
    A("s_and_b32 s%d, s2, 7" % sTB)
    A("s_lshl_b32 s%d, s%d, 2" % (sTB, sTB))
    A("s_bfe_u32 s%d, s2, 0x20003" % sT0)
    A("s_add_u32 s%d, s%d, s%d" % (sTB, sTB, sT0))
    A("s_lshr_b32 s%d, s2, 5" % sNB)
    A("s_mul_i32 s%d, s%d, %d" % (sWOB_, sW, 32 * 896))
    A("s_lshl_b32 s%d, s%d, 7" % (sT0, sNB))
    A("s_add_u32 s%d, s%d, s%d" % (sWOB_, sWOB_, sT0))
    A("s_max_u32 s%d, s%d, s%d" % (sSKW, sW, sNB))
    A("v_lshlrev_b32 v%d, 4, v%d" % (VL16, VLN))
    A("v_and_b32 v3, 31, v%d" % VLN)
    A("v_lshrrev_b32 v24, 5, v%d" % VLN)
    A("v_bfe_u32 v25, v%d, 1, 3" % VLN)
    A("v_xor_b32 v25, v25, v24")
    A("v_lshlrev_b32 v25, 4, v25")
    A("v_lshl_add_u32 v25, v3, 7, v25")
    A("v_add_u32 v%d, s%d, v25" % (XA, sM4))
    for ks in range(1, 4):
        A("v_xor_b32 v%d, %d, v%d" % (XA + ks, ks * 32, XA))
    for ks in range(4):
        A("v_add_u32 v%d, %d, v%d" % (XB + ks, LB, XA + ks))
    A("v_bfe_u32 v25, v%d, 2, 2" % VLN)
    A("v_lshl_add_u32 v25, v24, 3, v25")
    A("v_bfe_u32 v26, v%d, 4, 1" % VLN)
    A("v_lshlrev_b32 v26, 5, v26")
    A("v_lshl_add_u32 v25, v25, 6, v26")
    A("v_and_b32 v26, 3, v%d" % VLN)
    A("v_lshl_add_u32 v25, v26, 3, v25")
    A("v_add_u32 v%d, %d, v25" % (WA, LWK))
    A("v_add_u32 v%d, %d, v25" % (WQ, LB))
    A("v_cmp_gt_u32 %s, 32, v%d" % (sr(sLOW, 2), VLN))
    A("v_cmp_eq_u32 %s, 24, v3" % sr(sL24, 2))
    A("s_lshr_b32 s%d, s%d, 2" % (sT0, sW))
    A("s_lshl_b32 s%d, s%d, 14" % (sT0, sT0))
    A("v_add_u32 v%d, s%d, v%d" % (VKA, sT0, VL16))
    A("v_add_u32 v%d, %d, v%d" % (VKD, LD, VKA))
    A("v_lshlrev_b32 v15, 1, v%d" % VLN)
    A("v_add_u32 v3, s%d, v%d" % (sQB, VLN))
    A("v_and_b32 v3, 7, v3")
    A("v_lshlrev_b32 v123, 3, v3")

    AK, AV, AQ = 32, 48, 64

    def wrd(i, ks, sec, buf):
        for t in range(2):
            L.issue(("w", ks), "ds_read_b64_tr_b16 %s, v%d offset:%d" % (
                vr(WF + 8 * buf + 4 * sec + 2 * t, 2), WA, sec * WSEC + i * 4096 + ks * 1024 + t * 256))

    waits = [10, 10, 10, 10, 12, 11, 6]
    for i in range(7):
        A("s_waitcnt vmcnt(%d)" % waits[i])
        A("s_barrier")
        if i == 0:
            stamp(1)
        sl = XSLOT[i % 3]
        for ks in range(4):
            L.issue("x", "ds_read_b128 %s, v%d offset:%d" % (
                vr(XF + 16 * i + 4 * ks, 4), (XB if sl == LB else XA) + ks, 0 if sl == LB else sl))
        for ks in range(2):
            wrd(i, ks, 0, ks)
            wrd(i, ks, 1, ks)
        if i <= 4:
            L.need("x")
        if i <= 3:
            group(i + 3)
        if i == 3:
            A("buffer_load_ushort v%d, v15, s[16:19], s%d offen" % (VGT, sCQ))
            A("buffer_load_dwordx2 %s, v%d, s[32:35], 0 offen sc1" % (vr(VN, 2), VFO))
        if i == 4:
            A("s_add_u32 m0, s%d, %d" % (sM4, LB))
            for ks in range(4):
                if ks:
                    A("s_add_u32 s%d, s%d, %d" % (sDONE, sDONE, 16 * 2688 - 1024))
                else:
                    A("s_nop 0")
                A("buffer_load_dwordx4 v%d, s[8:11], s%d offen offset:%d lds" % (VWD, sDONE, ks * 1024))
        for ks in range(4):
            L.need(("w", ks))
            x = XF + 16 * i + 4 * ks
            wb = WF + 8 * (ks & 1)
            first = (i == 0 and ks == 0)
            mf(AK, wb, x, "0" if first else vr(AK, 16))
            mf(AV, x, wb + 4, "0" if first else vr(AV, 16))
            if ks + 2 < 4:
                wrd(i, ks + 2, 0, ks & 1)
                wrd(i, ks + 2, 1, ks & 1)
    stamp(2)
    A("v_mov_b32 v24, 0x3f80")
    A("v_mov_b32 v25, 0x3f803f80")
    A("v_add_u32 v26, s%d, v%d" % (sM4, VL16))
    A("v_lshl_add_u32 v27, v%d, 2, s%d" % (VL16, sM4))
    A("v_add_u32 v27, %d, v27" % (LB + 48))
    A("s_mov_b32 s%d, 0" % sDONE)
    A("s_nop 4")
    for r in range(8):
        A("v_cvt_pk_bf16_f32 v%d, v%d, v%d" % (K0 + r, AK + 2 * r, AK + 2 * r + 1))
    A("v_cndmask_b32 v%d, v%d, v24, %s" % (K0 + 6, K0 + 6, sr(sLOW, 2)))
    A("v_cndmask_b32 v%d, v%d, 0, %s" % (K0 + 7, K0 + 7, sr(sLOW, 2)))
    for p in range(2):
        A("buffer_store_dwordx4 %s, v%d, s[12:15], s%d offen offset:%d sc1" % (vr(K0 + 4 * p, 4), VL16, sKVB, p * 1024))
    for r in range(8):
        A("v_cvt_pk_bf16_f32 v%d, v%d, v%d" % (V0 + r, AV + 2 * r, AV + 2 * r + 1))
    for r in range(8):
        A("v_cndmask_b32 v%d, v%d, v25, %s" % (V0 + r, V0 + r, sr(sL24, 2)))
    for p in range(2, 4):
        A("buffer_store_dwordx4 %s, v%d, s[12:15], s%d offen offset:%d sc1" % (vr(K0 + 4 * p, 4), VL16, sKVB, p * 1024))
    A("s_waitcnt vmcnt(4)")
    L.issue("g", "ds_write_b16 v27, v%d" % VGT)
    for p in range(4):
        L.issue("kv", "ds_write_b128 v26, %s offset:%d" % (vr(K0 + 4 * p, 4), LA + p * 1024))
    L.need("g")
    A("s_barrier")
    stamp(3)

    def qrd(k):
        for t in range(2):
            L.issue(("q", k), "ds_read_b64_tr_b16 %s, v%d offset:%d" % (vr(WF + 4 * (k & 3) + 2 * t, 2), WQ, k * 1024 + t * 256))
    for k in range(4):
        qrd(k)
    for k in range(28):
        L.need(("q", k))
        mf(AQ, WF + 4 * (k & 3), XF + 4 * k, "0" if k == 0 else vr(AQ, 16))
        if k + 4 < 28:
            qrd(k + 4)
    A("s_lshr_b32 s%d, s%d, 1" % (sT0, sM4))
    A("s_add_u32 s%d, s%d, %d" % (sT0, sT0, LE))
    A("s_xor_b32 s%d, s%d, 8192" % (sT1, sT0))
    A("v_add_u32 v26, s%d, v%d" % (sT0, VL16))
    A("v_add_u32 v27, s%d, v%d" % (sT1, VL16))
    A("s_nop 6")
    A("v_mul_f32 v%d, %s, v%d" % (VG, f32(-LOG2E), AQ + 12))
    for r in range(8):
        A("v_pk_mul_f32 %s, %s, %s" % (vr(AQ + 2 * r, 2), vr(AQ + 2 * r, 2), sr(sQS, 2)))
    A("v_exp_f32 v%d, v%d" % (VG, VG))
    for r in range(8):
        A("v_cvt_pk_bf16_f32 v%d, v%d, v%d" % (QA + r, AQ + 2 * r, AQ + 2 * r + 1))
    A("v_cndmask_b32 v%d, v%d, 0, %s" % (QA + 6, QA + 6, sr(sLOW, 2)))
    A("v_add_f32 v%d, 1.0, v%d" % (VG, VG))
    mf(S[1], K0, QA, "0")
    mf(S[1], K1, QA + 4, vr(S[1], 16))
    L.issue("qx", "ds_write_b128 v26, %s" % vr(QA, 4))
    A("v_rcp_f32 v%d, v%d" % (VG, VG))
    A("v_mov_b32 v24, s%d" % sGB)
    A("v_cmp_eq_u64 vcc, 0, %s" % vr(VN, 2))
    A("v_fma_f32 v%d, s%d, v%d, v24" % (VG, sGA, VG))
    A("s_cbranch_vccnz Lnonce_wait")
    A.label("Lnonce_ok")
    tail.append(("nonce",))
    A("s_nop 7")
    s = S[1]
    A("v_max3_f32 v%d, v%d, v%d, v%d" % (E, s, s + 1, s + 2))
    A("v_max3_f32 v%d, v%d, v%d, v%d" % (E + 1, s + 3, s + 4, s + 5))
    A("v_max3_f32 v%d, v%d, v%d, v%d" % (E + 2, s + 6, s + 7, s + 8))
    A("v_max3_f32 v%d, v%d, v%d, v%d" % (E + 3, s + 9, s + 10, s + 11))
    A("v_max3_f32 v%d, v%d, v%d, v%d" % (E, E, s + 12, s + 13))
    A("v_max3_f32 v%d, v%d, v%d, v%d" % (E + 1, E + 1, s + 14, s + 15))
    A("v_max3_f32 v%d, v%d, v%d, v%d" % (E, E, E + 2, E + 3))
    A("v_max_f32 v%d, v%d, v%d" % (E, E, E + 1))
    A("v_mov_b32 v%d, v%d" % (E + 1, E))
    A("s_nop 1")
    A("v_permlane32_swap_b32 v%d, v%d" % (E, E + 1))
    A("s_nop 1")
    A("v_max_f32 v%d, v%d, v%d" % (E, E, E + 1))
    A("v_cvt_pk_bf16_f32 v%d, -v%d, 0" % (E, E))
    A("v_cndmask_b32 v%d, v%d, v%d, %s" % (QA + 6, QA + 6, E, sr(sLOW, 2)))
    L.issue("qx", "ds_write_b128 v26, %s offset:1024" % vr(QA + 4, 4))
    stamp(4)
    A("s_lshl_b32 s%d, s%d, 3" % (sT0, sQB))
    A("s_add_u32 s%d, s%d, s%d" % (sT0, sT0, sFKV))
    A("s_waitcnt vmcnt(0)")
    A("s_mov_b64 exec, 1")
    A("buffer_store_dwordx2 %s, v%d, s[12:15], s%d offen sc1" % (vr(VN, 2), VFO, sT0))
    A("s_mov_b64 exec, -1")
    L.drain()
    A("s_barrier")
    stamp(5)

    def poll(reg):
        A("buffer_load_dwordx2 %s, v123, s[12:15], s%d offen sc1" % (vr(reg, 2), sFKV))

    def kvdma(j):
        A("s_add_u32 s%d, s%d, %d" % (sT0, sKVB, j << 15))
        A("s_and_b32 s%d, s%d, 0x3ffff" % (sT0, sT0))
        A("s_and_b32 s%d, s%d, 0xfffc0000" % (sT1, sKVB))
        A("s_add_u32 m0, s%d, %d" % (sM4, RING[j % 3]))
        A("s_or_b32 s%d, s%d, s%d" % (sT0, sT0, sT1))
        for p in range(4):
            A("buffer_load_dwordx4 v%d, s[12:15], s%d offen offset:%d sc1 lds" % (VL16, sT0, p * 1024))

    def wodma(kq):
        Ls = A.newlabel("skw")
        A("s_cmp_eq_u32 s%d, 7" % sSKW)
        A("s_cbranch_scc1 %s" % Ls)
        A("s_add_u32 m0, s%d, %d" % (sM4, WOREG[kq]))
        for g in range(4):
            A("s_add_u32 s%d, s%d, %d" % (sT0, sWOB_, (kq & 1) * 224 * 896 + g * 6144))
            A("buffer_load_dwordx4 v124, %s, s%d offen offset:%d lds" % (sr(SWOB if kq >= 2 else SWOA, 4), sT0, g * 1024))
        A.label(Ls)

    def check(reg, n, idx):
        Ls = "Lchk_%d" % idx
        A("s_cmp_lg_u32 s%d, 0" % sDONE)
        A("s_cbranch_scc1 %s" % Ls)
        A("s_waitcnt vmcnt(%d)" % n)
        A("v_cmp_eq_u64 %s, %s, %s" % (sr(sFM, 2), vr(reg, 2), vr(VN, 2)))
        A("s_and_b32 s%d, s%d, 6" % (sT0, sFM))
        A("s_cmp_eq_u32 s%d, 6" % sT0)
        A("s_cbranch_scc1 Lgo_%d" % idx)
        poll(reg)
        A.label(Ls)
        tail.append(("go", idx))

    def rd(tag, dst, i, part):
        sl = RING[(i >> 2) % 3]
        base, off = (VKD, 0) if sl == LD else (VKA, sl)
        L.issue(tag, "ds_read_b128 %s, v%d offset:%d" % (vr(dst, 4), base, off + (i & 3) * 4096 + part * 1024))

    rd("K0", K0, 0, 0)
    rd("K1", K1, 0, 1)
    L.issue("QB", "ds_read_b128 %s, v27" % vr(QB, 4))
    L.issue("QB", "ds_read_b128 %s, v27 offset:1024" % vr(QB + 4, 4))
    rd("V0", V0, 0, 2)
    poll(VFA)
    A("v_bfe_u32 v3, v%d, 2, 3" % VLN)
    A("v_mul_u32_u24 v3, 896, v3")
    A("v_lshrrev_b32 v5, 5, v%d" % VLN)
    A("v_lshl_add_u32 v3, v5, 6, v3")
    A("v_and_b32 v5, 3, v%d" % VLN)
    A("v_lshl_add_u32 v124, v5, 4, v3")
    L.need("K0")
    mf(S[0], K0, QA, "0")
    L.need("K1")
    mf(S[0], K1, QA + 4, vr(S[0], 16))
    L.need("QB")
    A("s_nop 7")
    Q = [QA, QB]
    for u in range(64):
        j, st, i, a = u >> 3, u & 7, u >> 1, u & 1
        sc, sn = S[u & 1], S[(u + 1) & 1]

        def grp(g, pprev):
            if not (u == 0 and g == 0):
                A("v_cvt_pk_bf16_f32 v%d, v%d, v%d" % (pprev, E + 2, E + 3))
            for k in range(4):
                A("v_exp_f32 v%d, v%d" % (E + k, sc + 4 * g + k))
            A("v_cvt_pk_bf16_f32 v%d, v%d, v%d" % (P + 2 * g, E, E + 1))

        if st == 6:
            if j == 0:
                A("s_cmp_eq_u32 s%d, 0" % sDONE)
                A("s_cbranch_scc1 Lspin0")
                A.label("Lspin0_ret")
                tail.append(("spin0",))
                A("s_waitcnt vmcnt(4)")
            elif j < 7:
                A("s_waitcnt vmcnt(0)")
            A("s_barrier")
            if j == 0:
                stamp(7)
        if u + 1 < 64:
            L.need("K0")
            mf(sn, K0, Q[(u + 1) & 1], "0")
            if a == 0 and i + 1 < 32:
                rd("K0", K0, i + 1, 0)
        if u == 0:
            A("s_nop 2")
        grp(0, P + 7)
        if u + 1 < 64:
            L.need("K1")
            mf(sn, K1, Q[(u + 1) & 1] + 4, vr(sn, 16))
            if a == 0 and i + 1 < 32:
                rd("K1", K1, i + 1, 1)
        grp(1, P + 1)
        if st == 6:
            if j == 0:
                poll(VFA)
            if 1 <= j <= 5:
                if j == 1:
                    A("v_cmp_eq_u64 %s, %s, %s" % (sr(sFM, 2), vr(VFA, 2), vr(VN, 2)))
                A("s_bitcmp0_b32 s%d, %d" % (sFM, j + 2))
                A("s_cbranch_scc1 Lslow_%d" % j)
                A.label("Lslow_%d_ret" % j)
                tail.append(("slow", j))
                kvdma(j + 2)
        if u >= 1:
            L.need("V1")
            mf(O[(u - 1) & 1], V1, P + 4, vr(O[(u - 1) & 1], 16))
        if a == 0:
            rd("V1", V1, i, 3)
        grp(2, P + 3)
        if st == 6 and j in (0, 1, 6):
            wodma({0: 0, 1: 1, 6: 2}[j])
        L.need("V0")
        mf(O[u & 1], V0, P, "0" if u < 2 else vr(O[u & 1], 16))
        if a == 1 and i + 1 < 32:
            rd("V0", V0, i + 1, 2)
        grp(3, P + 5)
        if j == 0:
            if st == 0:
                poll(VFB)
            elif st <= 4:
                check(VFA if st & 1 else VFB, 1, st)
    A("v_cvt_pk_bf16_f32 v%d, v%d, v%d" % (P + 7, E + 2, E + 3))
    A("v_add_u32 v26, s%d, v%d" % (sM4, VL16))
    A("v_xor_b32 v27, 0x4000, v26")
    mf(O[1], V1, P + 4, vr(O[1], 16))
    stamp(8)
    A("s_nop 11")
    for q in range(4):
        L.issue("ox", "ds_write_b128 v26, %s offset:%d" % (vr(O[1] + 4 * q, 4), LA + q * 1024))
    L.drain()
    A("s_barrier")
    for q in range(4):
        L.issue(("or", q), "ds_read_b128 %s, v27 offset:%d" % (vr(O[1] + 4 * q, 4), LA + q * 1024))
    wodma(3)
    A("v_mov_b32 v%d, 0" % E)
    A("v_mov_b32 v%d, 0" % (E + 1))
    A("v_mov_b32 v%d, %s" % (E + 2, f32(2.0 ** 100)))
    A("v_mov_b32 v%d, %s" % (E + 3, f32(2.0 ** -60)))
    Oa = O[0]
    for q in range(4):
        L.need(("or", q))
        for r in (4 * q, 4 * q + 2):
            A("v_pk_add_f32 %s, %s, %s" % (vr(Oa + r, 2), vr(Oa + r, 2), vr(O[1] + r, 2)))
    for r in range(0, 16, 2):
        A("v_pk_fma_f32 %s, %s, 0, %s" % (vr(E, 2), vr(Oa + r, 2), vr(E, 2)))
    A("v_cmp_nle_f32 vcc, v%d, v%d" % (Oa + 12, E + 2))
    A("v_cmp_nge_f32 %s, v%d, v%d" % (sr(sT0, 2), Oa + 12, E + 3))
    A("v_cmp_u_f32 %s, v%d, v%d" % (sr(sT2, 2), E, E + 1))
    A("s_or_b64 vcc, vcc, %s" % sr(sT0, 2))
    A("s_and_b64 vcc, vcc, %s" % sr(sLOW, 2))
    A("s_or_b64 vcc, vcc, %s" % sr(sT2, 2))
    A("s_cbranch_scc1 Lfallback")
    A.label("Lepi")
    A("v_rcp_f32 v%d, v%d" % (E, Oa + 12))
    A("s_lshr_b32 s%d, s%d, 12" % (sT0, sKVB))
    A("s_and_b32 s%d, s%d, 63" % (sT0, sT0))
    A("v_mul_f32 v%d, v%d, v%d" % (E, E, VG))
    A("s_lshl_b32 s%d, s%d, 16" % (sT1, sT0))
    A("v_mov_b32 v%d, v%d" % (E + 1, E))
    A("s_lshl_b32 s%d, s%d, 11" % (sT2, sHB))
    A("s_add_u32 s%d, s%d, s%d" % (sT1, sT1, sT2))
    A("v_permlane32_swap_b32 v%d, v%d" % (E, E + 1))
    A("s_add_u32 s%d, s%d, %d" % (sT1, sT1, WS_O))
    for r in range(0, 16, 2):
        A("v_pk_mul_f32 %s, %s, %s op_sel_hi:[1,0]" % (vr(Oa + r, 2), vr(Oa + r, 2), vr(E, 2)))
    for r in range(8):
        A("v_cvt_pk_bf16_f32 v%d, v%d, v%d" % (P + r, Oa + 2 * r, Oa + 2 * r + 1))
    A("v_cndmask_b32 v%d, v%d, 0, %s" % (P + 6, P + 6, sr(sLOW, 2)))
    A("v_cndmask_b32 v%d, v%d, 0, %s" % (P + 7, P + 7, sr(sLOW, 2)))
    A("buffer_store_dwordx4 %s, v%d, s[12:15], s%d offen sc1" % (vr(P, 4), VL16, sT1))
    A("buffer_store_dwordx4 %s, v%d, s[12:15], s%d offen offset:1024 sc1" % (vr(P + 4, 4), VL16, sT1))
    A("s_lshl_b32 s%d, s%d, 9" % (sT0, sT0))
    A("s_lshr_b32 s%d, s%d, 3" % (sT1, sHB))
    A("s_lshl_b32 s%d, s%d, 7" % (sT1, sT1))
    A("s_add_u32 s%d, s%d, s%d" % (sT0, sT0, sT1))
    A("s_and_b32 s%d, s%d, 7" % (sT1, sHB))
    A("s_lshl_b32 s%d, s%d, 3" % (sT1, sT1))
    A("s_add_u32 s%d, s%d, s%d" % (sT0, sT0, sT1))
    A("s_add_u32 s%d, s%d, %d" % (sFKV, sT0, WS_FO))
    A("s_cmp_eq_u32 s%d, 7" % sNB)
    A("s_cbranch_scc1 Lflag_only")
    A("s_and_b32 s%d, s%d, 3" % (sT0, sW))
    A("s_lshl_b32 s%d, s%d, 3" % (sT1, sT0))
    A("s_lshr_b32 s%d, 0x01020403, s%d" % (sT1, sT1))
    A("s_and_b32 s%d, s%d, 7" % (sT1, sT1))
    A("s_lshl_b32 s%d, s%d, 15" % (sT1, sT1))
    A("v_bfe_u32 v3, v%d, 2, 2" % VLN)
    A("v_bfe_u32 v5, v%d, 4, 1" % VLN)
    A("v_lshlrev_b32 v5, 5, v5")
    A("v_lshl_add_u32 v3, v3, 6, v5")
    A("v_and_b32 v5, 3, v%d" % VLN)
    A("v_lshl_add_u32 v3, v5, 3, v3")
    A("v_add_u32 v3, s%d, v3" % sT1)
    A("v_lshrrev_b32 v5, 5, v%d" % VLN)
    A("v_lshl_add_u32 v8, v5, 8, v3")
    A("v_mul_u32_u24 v5, 768, v5")
    A("v_add3_u32 v9, v5, v3, 0x100" if False else "v_add_u32 v9, v5, v3")
    A("s_waitcnt vmcnt(2)")
    A("s_barrier")
    for hl in range(8):
        for s_ in range(2):
            for nt in range(2):
                for t in range(2):
                    g0 = 7 * hl + (5 if (s_, t) == (1, 1) else 4 * s_ + 2 * t)
                    reg = 128 + ((hl * 2 + s_) * 2 + nt) * 4 + 2 * t
                    A("ds_read_b64_tr_b16 %s, v%d offset:%d" % (
                        vr(reg, 2), 9 if g0 & 1 else 8, (g0 >> 1) * 1024 + nt * 512 + (256 if g0 & 1 else 0)))
    A("s_waitcnt vmcnt(0)")
    A("s_mov_b64 exec, 1")
    A("buffer_store_dwordx2 %s, v%d, s[12:15], s%d offen sc1" % (vr(VN, 2), VFO, sFKV))
    A("s_mov_b64 exec, -1")
    stamp(9)
    A("s_lshl_b32 s%d, s%d, 1" % (sT1, sTB))
    A("s_lshr_b32 s%d, s%d, 2" % (sT2, sW))
    A("s_add_u32 s%d, s%d, s%d" % (sT1, sT1, sT2))
    A("s_lshl_b32 s%d, s%d, 2" % (sT3, sT1))
    A("s_add_u32 s%d, s%d, s%d" % (sT3, sT3, sT0))
    A("s_lshl_b32 s%d, s%d, 7" % (sFKV, sT3))
    A("s_add_u32 s%d, s%d, %d" % (sFKV, sFKV, WS_FO))
    A("s_lshl_b32 s%d, s%d, 14" % (sKVB, sT3))
    A("s_add_u32 s%d, s%d, %d" % (sKVB, sKVB, WS_O))
    poll(VFA)
    A("s_mov_b32 s%d, 0x4000" % sSPIN)
    L.drain()
    A("s_barrier")
    A.label("Lospin")
    A("s_waitcnt vmcnt(0)")
    A("v_cmp_ne_u64 vcc, %s, %s" % (vr(VFA, 2), vr(VN, 2)))
    A("s_cbranch_vccz Logo")
    poll(VFA)
    A("s_sub_u32 s%d, s%d, 1" % (sSPIN, sSPIN))
    A("s_cbranch_scc0 Lospin")
    A("s_waitcnt vmcnt(0)")
    A.label("Logo")
    stamp(10)
    for k in range(16):
        if k and (k & 3) == 0:
            A("s_add_u32 s%d, s%d, 4096" % (sKVB, sKVB))
        A("buffer_load_dwordx4 %s, v%d, s[12:15], s%d offen offset:%d sc1" % (vr(64 + 4 * k, 4), VL16, sKVB, (k & 3) * 1024))
    A("v_and_b32 v3, 31, v%d" % VLN)
    A("v_lshrrev_b32 v5, 5, v%d" % VLN)
    A("v_and_b32 v10, 7, v%d" % VLN)
    A("v_xor_b32 v5, v5, v10")
    A("v_lshlrev_b32 v5, 4, v5")
    A("v_lshl_add_u32 v3, v3, 8, v5")
    A("s_lshl_b32 s%d, s%d, 13" % (sT0, sW))
    A("v_add_u32 v12, s%d, v3" % sT0)
    for q in range(1, 4):
        A("v_xor_b32 v%d, %d, v12" % (12 + q, q * 32))
    A("v_lshrrev_b32 v3, 3, v%d" % VLN)
    A("v_lshlrev_b32 v5, 1, v10")
    A("v_xor_b32 v5, v5, v3")
    A("v_lshlrev_b32 v5, 4, v5")
    A("v_lshl_add_u32 v5, v3, 8, v5")
    A("s_and_b32 s%d, s%d, 3" % (sT0, sW))
    A("s_lshl_b32 s%d, s%d, 11" % (sT0, sT0))
    A("s_lshl_b32 s%d, s%d, 15" % (sT2, sT2))
    A("s_add_u32 s%d, s%d, s%d" % (sT0, sT0, sT2))
    A("v_add_u32 v16, s%d, v5" % sT0)
    A("v_xor_b32 v17, 16, v16")
    A("v_mul_u32_u24 v3, 896, v3")
    A("v_lshl_add_u32 v18, v10, 4, v3")
    A("s_lshl_b32 s%d, s%d, 3" % (sT0, sTB))
    A("s_add_u32 s%d, s%d, s%d" % (sT0, sT0, sW))
    A("s_mul_i32 s%d, s%d, %d" % (sT0, sT0, 8 * 896))
    A("s_lshl_b32 s%d, s%d, 7" % (sT1, sNB))
    A("s_add_u32 s%d, s%d, s%d" % (sT0, sT0, sT1))
    for k in range(16):
        A("s_waitcnt vmcnt(%d)" % (15 - k))
        for nt in range(2):
            mf(32 + 16 * nt, 128 + (k * 2 + nt) * 4, 64 + 4 * k, "0" if k == 0 else vr(32 + 16 * nt, 16))
    stamp(11)
    A("s_nop 10")
    for nt in range(2):
        for q in range(4):
            L.issue("r", "ds_write_b128 v%d, %s offset:%d" % (12 + q, vr(32 + 16 * nt + 4 * q, 4), nt * 128))
    L.drain()
    A("s_barrier")
    for src in range(4):
        for e in range(2):
            L.issue(("s", src), "ds_read_b128 %s, v%d offset:%d" % (vr(64 + 8 * src + 4 * e, 4), 16 + e, src * 8192))
    for src in range(1, 4):
        L.need(("s", src))
        for r in range(0, 8, 2):
            A("v_pk_add_f32 %s, %s, %s" % (vr(64 + r, 2), vr(64 + r, 2), vr(64 + 8 * src + r, 2)))
    for r in range(4):
        A("v_cvt_pk_bf16_f32 v%d, v%d, v%d" % (24 + r, 64 + 2 * r, 65 + 2 * r))
    A("buffer_store_dwordx4 v[24:27], v18, s[28:31], s%d offen" % sT0)

    def ts_out():
        if not TS:
            return
        A("s_waitcnt vmcnt(0)")
        A("s_memtime s[96:97]")
        A("s_memrealtime s[100:101]")
        A("s_waitcnt lgkmcnt(0)")
        A("s_mov_b32 s%d, s96" % (STS + 12))
        A("s_mov_b32 s%d, s98" % (STS + 13))
        A("s_mov_b32 s%d, s100" % (STS + 14))
        A("s_getreg_b32 s%d, hwreg(HW_REG_XCC_ID)" % (STS + 15))
        for r in range(16):
            A("v_mov_b32 v%d, s%d" % (32 + r, STS + r))
        A("s_lshl_b32 s64, s2, 3")
        A("s_add_u32 s64, s64, s%d" % sW)
        A("s_lshl_b32 s64, s64, 6")
        A("s_add_u32 s64, s64, %d" % WS_TS)
        A("s_mov_b64 exec, 1")
        for q in range(4):
            A("buffer_store_dwordx4 %s, v%d, s[12:15], s64 offen offset:%d" % (vr(32 + 4 * q, 4), VFO, q * 16))
    ts_out()
    A.label(Lend)
    A("s_endpgm")

    A.label("Lflag_only")
    A("s_waitcnt vmcnt(0)")
    A("s_mov_b64 exec, 1")
    A("buffer_store_dwordx2 %s, v%d, s[12:15], s%d offen sc1" % (vr(VN, 2), VFO, sFKV))
    A("s_mov_b64 exec, -1")
    stamp(9)
    ts_out()
    A("s_endpgm")

    for t in tail:
        if t[0] == "nonce":
            A.label("Lnonce_wait")
            A("s_mov_b32 s%d, 0x4000" % sSPIN)
            A.label("Lnonce_l")
            A("buffer_load_dwordx2 %s, v%d, s[32:35], 0 offen sc1" % (vr(VN, 2), VFO))
            A("s_waitcnt vmcnt(0)")
            A("v_cmp_eq_u64 vcc, 0, %s" % vr(VN, 2))
            A("s_cbranch_vccz Lnonce_ok")
            A("s_sub_u32 s%d, s%d, 1" % (sSPIN, sSPIN))
            A("s_cbranch_scc0 Lnonce_l")
            A("s_branch Lnonce_ok")
        elif t[0] == "go":
            A.label("Lgo_%d" % t[1])
            kvdma(1)
            kvdma(2)
            A("s_mov_b32 s%d, 1" % sDONE)
            if TS:
                A("s_mov_b32 s%d, %d" % (STS + 6, t[1]))
            A("s_branch Lchk_%d" % t[1])
        elif t[0] == "spin0":
            A.label("Lspin0")
            A("s_mov_b32 s%d, 0x4000" % sSPIN)
            A.label("Lspin0_l")
            A("s_waitcnt vmcnt(0)")
            A("v_cmp_eq_u64 %s, %s, %s" % (sr(sFM, 2), vr(VFB, 2), vr(VN, 2)))
            A("s_and_b32 s%d, s%d, 6" % (sT0, sFM))
            A("s_cmp_eq_u32 s%d, 6" % sT0)
            A("s_cbranch_scc1 Lspin0_go")
            poll(VFB)
            A("s_sub_u32 s%d, s%d, 1" % (sSPIN, sSPIN))
            A("s_cbranch_scc0 Lspin0_l")
            A.label("Lspin0_go")
            kvdma(1)
            kvdma(2)
            if TS:
                A("s_sub_u32 s%d, 0x4006, s%d" % (STS + 6, sSPIN))
            A("s_branch Lspin0_ret")
        elif t[0] == "slow":
            j = t[1]
            A.label("Lslow_%d" % j)
            A("s_mov_b32 s%d, 0x4000" % sSPIN)
            A.label("Lslow_%d_l" % j)
            poll(VFA)
            A("s_waitcnt vmcnt(0)")
            A("v_cmp_eq_u64 %s, %s, %s" % (sr(sFM, 2), vr(VFA, 2), vr(VN, 2)))
            A("s_bitcmp1_b32 s%d, %d" % (sFM, j + 2))
            A("s_cbranch_scc1 Lslow_%d_ret" % j)
            A("s_sub_u32 s%d, s%d, 1" % (sSPIN, sSPIN))
            A("s_cbranch_scc0 Lslow_%d_l" % j)
            A("s_branch Lslow_%d_ret" % j)

    NM = S[1]
    A.label("Lfallback")
    A("v_cndmask_b32 v%d, v%d, 0, %s" % (QA + 6, QA + 6, sr(sLOW, 2)))
    A("v_mov_b32 v%d, 0xff800000" % E)
    A("s_lshl_b32 s%d, s%d, 18" % (sT0, sHB))
    A("s_mov_b32 s%d, 64" % sT1)
    A.label("Lfb1")
    A("buffer_load_dwordx4 %s, v%d, s[12:15], s%d offen sc1" % (vr(K0, 4), VL16, sT0))
    A("buffer_load_dwordx4 %s, v%d, s[12:15], s%d offen offset:1024 sc1" % (vr(K1, 4), VL16, sT0))
    A("s_waitcnt vmcnt(0)")
    mf(S[0], K0, QA, "0")
    mf(S[0], K1, QA + 4, vr(S[0], 16))
    A("s_nop 11")
    for r in range(0, 16, 2):
        A("v_max3_f32 v%d, v%d, v%d, v%d" % (E, E, S[0] + r, S[0] + r + 1))
    A("s_add_u32 s%d, s%d, 4096" % (sT0, sT0))
    A("s_sub_u32 s%d, s%d, 1" % (sT1, sT1))
    A("s_cmp_lg_u32 s%d, 0" % sT1)
    A("s_cbranch_scc1 Lfb1")
    A("v_mov_b32 v%d, v%d" % (E + 1, E))
    A("s_nop 1")
    A("v_permlane32_swap_b32 v%d, v%d" % (E, E + 1))
    A("s_nop 1")
    A("v_max_f32 v%d, v%d, v%d" % (E, E, E + 1))
    for r in range(16):
        A("v_sub_f32 v%d, 0, v%d" % (NM + r, E))
        A("v_mov_b32 v%d, 0" % (Oa + r))
    A("s_lshl_b32 s%d, s%d, 18" % (sT0, sHB))
    A("s_mov_b32 s%d, 64" % sT1)
    A.label("Lfb2")
    for k, reg in enumerate((K0, K1, V0, V1)):
        A("buffer_load_dwordx4 %s, v%d, s[12:15], s%d offen offset:%d sc1" % (vr(reg, 4), VL16, sT0, k * 1024))
    A("s_waitcnt vmcnt(0)")
    mf(S[0], K0, QA, vr(NM, 16))
    mf(S[0], K1, QA + 4, vr(S[0], 16))
    A("s_nop 11")
    for r in range(16):
        A("v_exp_f32 v%d, v%d" % (S[0] + r, S[0] + r))
    A("s_nop 0")
    for r in range(8):
        A("v_cvt_pk_bf16_f32 v%d, v%d, v%d" % (P + r, S[0] + 2 * r, S[0] + 2 * r + 1))
    A("s_nop 1")
    mf(Oa, V0, P, vr(Oa, 16))
    mf(Oa, V1, P + 4, vr(Oa, 16))
    A("s_add_u32 s%d, s%d, 4096" % (sT0, sT0))
    A("s_sub_u32 s%d, s%d, 1" % (sT1, sT1))
    A("s_cmp_lg_u32 s%d, 0" % sT1)
    A("s_cbranch_scc1 Lfb2")
    A("s_nop 11")
    A("s_branch Lepi")
    A("s_endpgm")
    A.label("Lcode_end")
    return name, descriptor(name, 256, 256, 102), "grid=(256,1,1) block=(512,1,1) lds=163840"


def main(out):
    A = Asm()
    n, d, l = gen(A)
    head = ["; gated dual-branch MHA block, single fused launch: QKV projection -> attention -> output projection",
            "; @launch kernel=%s %s" % (n, l),
            '.amdgcn_target "amdgcn-amd-amdhsa--gfx950"', ".text"]
    open(out, "w").write("\n".join(head) + "\n" + A.text() + '.section .rodata,"a"\n' + d + "\n")


if __name__ == "__main__":
    for a in sys.argv[2:]:
        k, _, v = a.partition("=")
        OPT[k] = {"": True, "0": False, "1": True}.get(v, v)
    main(sys.argv[1])
```

```python
import sys, math
sys.path.insert(0, "gen")
from gen import Asm, vr, sr, f32, kernel_begin, descriptor

NAME = "gated_mix__softmax_full_mha__mha_block__prompt"
LOG2E = math.log2(math.e)
QSCALE = (28.0 ** -0.5) * LOG2E

WS_KV = 0
WS_O = 8 << 20
WS_FKV = 13 << 20
WS_FO = (12 << 20) + 65536
WS_XT = (12 << 20) + 131072
WS_USED = 16 << 20
WS_TS = 64 << 20

LA, LC, LD, LE, LB = 0, 32768, 65536, 98304, 131072
LWK = 65536
WSEC = 28672
XSLOT = [LA, LC]
RING = [LA, LC, LD]

SX, SW, SWS, SG, SWO, SOUT, SDBG = 4, 8, 12, 16, 20, 28, 32
sW, sHB, sQB, sC, sXB, sWB, sM4, sMW = 56, 57, 58, 59, 60, 61, 62, 63
sT0, sT1, sT2, sT3 = 64, 65, 66, 67
sKVB, sDONE = 68, 69
sLOW, sL24, sFM = 70, 72, 74
sQS = 76
sSPIN, sWOB_, sNB, sTB = 78, 79, 3, 36
sMWO, sFKV, sCQ, sGA, sGB = 37, 38, 39, 40, 41
sPEND, sOP, sFOP, sFOC, sOC, sKVH = 42, 43, 44, 45, 46, 47
sKS, sL, sOK = 48, 49, 50
sGO = 52
sXC, sXT, sXF = 24, 25, 26
STS = 80

VL16, VLN = 1, 2
VN, VFA, VFC, VFO, VG, V1B = 126, 240, 4, 6, 7, 116
VTE, VTO = 0, 125
QA, QB, P = 8, 16, 24
S = [32, 48]
O = [64, 80]
K0, K1, V0, V1, E = 96, 100, 104, 108, 112
VKA, VKD = 120, 121
VGT = 122
XF = 128
VXD, VWD, XA, VWD2, VGP, WA, WQ = 8, 12, 16, 20, 21, 13, 14

OPT = dict(ts=False, rot="q2h", osc="", sp="1", osync=True, tsb=False, wo=True, ost="dyn", wq="7777", qp=".......0123456", lo="2", look="5", kf="q12", kp="e0", fsh="7", g1="late", tlb="", pf=False, hk="e0.e1.p3.p3b.s0.s1.s2.s3.s4.s5", xp="s3", map="32x1", kvs="sc1")


class VQ:
    def __init__(self, A):
        self.A = A
        self.q = []

    def issue(self, tag, ins):
        self.A(ins)
        self.q.append(tag)

    def need(self, tag):
        if tag not in self.q:
            return
        idx = len(self.q) - 1 - self.q[::-1].index(tag)
        self.A("s_waitcnt vmcnt(%d)" % (len(self.q) - 1 - idx))
        self.q = self.q[idx + 1:]


class LQ:
    def __init__(self, A):
        self.A = A
        self.q = []

    def issue(self, tag, ins):
        self.A(ins)
        self.q.append(tag)

    def need(self, tag):
        if tag not in self.q:
            return
        idx = len(self.q) - 1 - self.q[::-1].index(tag)
        n = len(self.q) - 1 - idx
        self.A("s_waitcnt lgkmcnt(%d)" % min(n, 15))
        self.q = self.q[idx + 1:]

    def drain(self):
        self.A("s_waitcnt lgkmcnt(0)")
        self.q = []


def gen(A):
    name = "fused_kernel"
    kernel_begin(A, name)
    L = LQ(A)
    TS = OPT["ts"]
    tail = []
    OST = "" if OPT["ost"] == "no" else "sc1"

    def stamp(i, bar=False):
        if TS and (bar or not (OPT["tsb"] and i < 7)):
            A("s_memtime s[96:97]")
            L.drain()
            A("s_mov_b32 s%d, s96" % (STS + i))

    def mf(d, a, b, c):
        A("v_mfma_f32_32x32x16_bf16 %s, %s, %s, %s" % (vr(d, 16), vr(a, 4), vr(b, 4), c))

    Lend = "Lend"
    V = VQ(A)
    FSH = int(OPT["fsh"])
    A("s_cmp_ge_u32 s2, 256")
    A("s_cbranch_scc1 %s" % Lend)
    A("s_load_dwordx16 s[36:51], s[0:1], 0")
    A("s_load_dwordx4 s[52:55], s[0:1], 64")
    A("s_memrealtime s[98:99]")
    if TS:
        A("s_memtime s[96:97]")
    A("v_lshrrev_b32 v3, 6, v0")
    A("v_and_b32 v%d, 63, v0" % VLN)
    if OPT["map"] == "32x1":
        A("s_lshr_b32 s%d, s2, 3 ; MAP32" % sHB)
        A("v_readfirstlane_b32 s%d, v3" % sW)
        A("s_and_b32 s%d, s2, 7" % sQB)
    elif OPT["map"] == "4x8":
        A("s_and_b32 s%d, s2, 7" % sHB)
        A("v_readfirstlane_b32 s%d, v3" % sW)
        A("s_lshl_b32 s%d, s%d, 2" % (sHB, sHB))
        A("s_bfe_u32 s%d, s2, 0x20003" % sT0)
        A("s_add_u32 s%d, s%d, s%d" % (sHB, sHB, sT0))
        A("s_lshr_b32 s%d, s2, 5" % sQB)
        assert OPT["ost"] == "sc1"
    elif OPT["map"] == "8x4":
        A("s_bfe_u32 s%d, s2, 0x20001 ; MAP84" % sHB)
        A("v_readfirstlane_b32 s%d, v3" % sW)
        A("s_lshl_b32 s%d, s%d, 3" % (sHB, sHB))
        A("s_bfe_u32 s%d, s2, 0x30003" % sT0)
        A("s_add_u32 s%d, s%d, s%d" % (sHB, sHB, sT0))
        A("s_and_b32 s%d, s2, 1" % sQB)
        A("s_lshl_b32 s%d, s%d, 2" % (sQB, sQB))
        A("s_lshr_b32 s%d, s2, 6" % sT0)
        A("s_add_u32 s%d, s%d, s%d" % (sQB, sQB, sT0))
        assert OPT["ost"] == "sc1"
    A("v_lshrrev_b32 v3, 3, v%d" % VLN)
    A("v_lshrrev_b32 v5, 4, v%d" % VLN)
    A("v_xor_b32 v5, v5, v%d" % VLN)
    A("v_and_b32 v5, 7, v5")
    A("v_mul_u32_u24 v3, 896, v3")
    A("v_lshl_add_u32 v%d, v5, 4, v3" % VXD)
    A("v_xor_b32 v5, 64, v%d" % VXD)
    A("v_add_u32 v%d, 6144, v5" % (VXD + 1))
    A("v_add_u32 v%d, 12288, v%d" % (VXD + 2, VXD))
    A("v_add_u32 v%d, 18432, v5" % (VXD + 3))
    A("v_lshrrev_b32 v3, 2, v%d" % VLN)
    A("v_mul_u32_u24 v3, 2688, v3")
    A("v_and_b32 v5, 3, v%d" % VLN)
    A("v_lshlrev_b32 v5, 4, v5")
    A("v_min_u32 v5, 40, v5")
    A("v_add_u32 v%d, v3, v5" % VWD)
    if OPT["rot"] == "q2h":
        A("s_lshl_b32 s%d, s%d, 1" % (sC, sHB))
        A("s_add_u32 s%d, s%d, s%d" % (sC, sC, sQB))
    elif OPT["rot"] == "q3h":
        A("s_mul_i32 s%d, s%d, 3" % (sC, sHB))
        A("s_add_u32 s%d, s%d, s%d" % (sC, sC, sQB))
    elif OPT["rot"] == "qh":
        A("s_add_u32 s%d, s%d, s%d" % (sC, sHB, sQB))
    elif OPT["rot"] == "3h":
        A("s_mul_i32 s%d, s%d, 3" % (sC, sHB))
    else:
        A("s_mov_b32 s%d, 0" % sC)
    A("s_mul_i32 s%d, s%d, 147" % (sT0, sC))
    A("s_lshr_b32 s%d, s%d, 10" % (sT0, sT0))
    A("s_mul_i32 s%d, s%d, 7" % (sT0, sT0))
    A("s_sub_u32 s%d, s%d, s%d" % (sC, sC, sT0))
    A("s_lshl_b32 s%d, s%d, 3" % (sXB, sQB))
    A("s_add_u32 s%d, s%d, s%d" % (sXB, sXB, sW))
    A("s_lshl_b32 s%d, s%d, 12" % (sKVB, sXB))
    A("s_mul_i32 s%d, s%d, %d" % (sXB, sXB, 32 * 896))
    A("s_lshl_b32 s%d, s%d, 12" % (sM4, sW))
    A("s_and_b32 s%d, s%d, 15" % (sT2, sHB))
    A("s_mul_i32 s%d, s%d, 56" % (sT2, sT2))
    A("s_lshr_b32 s%d, s%d, 2" % (sT0, sW))
    A("s_and_b32 s%d, s%d, 3" % (sT1, sW))
    A("s_mul_i32 s%d, s%d, %d" % (sDONE, sT1, 16 * 2688))
    A("s_add_u32 s%d, s%d, s%d" % (sDONE, sDONE, sT2))
    A("s_mul_i32 s%d, s%d, 896" % (sWB, sT0))
    A("s_add_u32 s%d, s%d, s%d" % (sWB, sWB, sDONE))
    A("s_add_u32 s%d, s%d, 896" % (sWB, sWB))
    A("s_mul_i32 s%d, s%d, %d" % (sMW, sT0, WSEC))
    A("s_lshl_b32 s%d, s%d, 10" % (sT1, sT1))
    A("s_add_u32 s%d, s%d, s%d" % (sMW, sMW, sT1))
    A("s_add_u32 s%d, s%d, s%d" % (sT3, sC, sT0))
    A("s_mov_b32 s%d, %d" % (SX + 2, 2048 * 896))
    A("s_mov_b32 s%d, 0x00020000" % (SX + 3))
    A("s_mov_b32 s%d, %d" % (SW + 2, 448 * 2688))
    A("s_mov_b32 s%d, 0x00020000" % (SW + 3))
    A("s_cmp_ge_u32 s%d, 16" % sHB)
    A("s_waitcnt lgkmcnt(0)")
    A("s_mov_b32 s%d, s36" % SX)
    A("s_mov_b32 s%d, s37" % (SX + 1))
    A("s_cselect_b32 s%d, s44, s38" % SW)
    A("s_cselect_b32 s%d, s45, s39" % (SW + 1))
    if TS:
        A("s_mov_b32 s%d, s96" % STS)

    WQG = [int(c) for c in OPT["wq"]]

    def gw(i):
        A("s_mul_i32 s%d, s%d, %d" % (sT1, sC, 64 * 2688))
        A("s_add_u32 m0, s%d, %d" % (sMW, LWK + i * 4096))
        A("s_add_u32 s%d, s%d, s%d" % (sT1, sT1, sWB))
        V.issue(("G", i), "buffer_load_dwordx4 v%d, s[8:11], s%d offen lds" % (VWD, sT1))

    def gq(p, i):
        A("s_mul_i32 s%d, s%d, %d" % (sT1, sCQ, 64 * 2688))
        A("s_lshr_b32 s%d, s%d, 2" % (sT0, sM4))
        A("s_add_u32 m0, s%d, %d" % (sT0, LB + p * 8192))
        A("s_add_u32 s%d, s%d, s%d" % (sT1, sT1, sDONE))
        V.issue(("G", i), "buffer_load_dwordx4 v%d, s[8:11], s%d offen lds" % (VWD if p < 3 else VWD2, sT1))
        if p < 3:
            A("s_add_u32 s%d, s%d, 2" % (sCQ, sCQ))
            A("s_cmp_ge_u32 s%d, 7" % sCQ)
            A("s_cselect_b32 s%d, 7, 0" % sT1)
            A("s_sub_u32 s%d, s%d, s%d" % (sCQ, sCQ, sT1))

    def gx(i, g):
        if g == 0:
            A("s_lshl_b32 s%d, s%d, 7" % (sT2, sC))
            A("s_add_u32 m0, s%d, %d" % (sM4, XSLOT[i & 1]))
            A("s_add_u32 s%d, s%d, s%d" % (sT2, sT2, sXB))
        V.issue(("G", i), "buffer_load_dwordx4 v%d, s[4:7], s%d offen offset:%d lds" % (VXD + g, sT2, g * 1024))
        if g == 3 and i < 6:
            A("s_add_u32 s%d, s%d, 1" % (sC, sC))
            A("s_cmp_eq_u32 s%d, 7" % sC)
            A("s_cselect_b32 s%d, 0, s%d" % (sC, sC))

    def wpieces(i):
        r = [lambda: gw(i)] if i < 7 else []
        return r + [(lambda p=p: gq(p, i)) for p in range(4) if WQG[p] == i]

    def xpieces(i):
        return [(lambda g=g: gx(i, g)) for g in range(4)] if i < 7 else []

    assert min(WQG) >= 1
    for f in wpieces(0) + xpieces(0):
        f()
    if OPT["g1"] == "early":
        gw(1)
        for f in xpieces(1):
            f()
    A("s_mov_b32 s%d, s52" % SDBG)
    A("s_mov_b32 s%d, s53" % (SDBG + 1))
    A("s_mov_b32 s%d, 256" % (SDBG + 2))
    A("s_mov_b32 s%d, 0x00020000" % (SDBG + 3))
    A("v_mov_b32 v%d, 0" % VFO)
    A("s_or_b32 s%d, s%d, s2" % (sT0, sW))
    A("s_cbranch_scc1 Lnononce")
    A("v_mov_b32 v%d, s98" % VN)
    A("v_mov_b32 v%d, s99" % (VN + 1))
    A("v_or_b32 v%d, 1, v%d" % (VN, VN))
    A("s_mov_b64 exec, 1")
    A("buffer_store_dwordx2 %s, v%d, s[32:35], 0 offen sc1" % (vr(VN, 2), VFO))
    A("s_mov_b64 exec, -1")
    A.label("Lnononce")
    for srd, k, size in ((SWS, 54, WS_USED if not TS else 128 << 20), (SG, 48, 896), (SOUT, 50, 2048 * 896)):
        A("s_mov_b32 s%d, s%d" % (srd, k))
        A("s_mov_b32 s%d, s%d" % (srd + 1, k + 1))
        A("s_mov_b32 s%d, %d" % (srd + 2, size))
        A("s_mov_b32 s%d, 0x00020000" % (srd + 3))
    A("s_cmp_ge_u32 s%d, 4" % sW)
    A("s_cselect_b32 s%d, s46, s40" % SWO)
    A("s_cselect_b32 s%d, s47, s41" % (SWO + 1))
    A("s_cselect_b32 s%d, 0, -1" % sT0)
    A("s_mov_b32 s%d, %d" % (SWO + 2, 448 * 896))
    A("s_mov_b32 s%d, 0x00020000" % (SWO + 3))
    A("v_and_b32 v%d, s%d, v%d" % (VWD2, sT0, VWD))
    A("v_lshrrev_b32 v3, 4, v%d" % VLN)
    A("v_lshl_add_u32 v5, v3, 1, s%d" % sT3)
    A("v_subrev_u32 v24, 7, v5")
    A("v_min_u32 v5, v5, v24")
    A("v_and_b32 v24, 15, v%d" % VLN)
    A("v_lshlrev_b32 v15, 1, v24")
    A("v_lshl_add_u32 v15, v5, 7, v15")
    A("s_and_b32 s%d, s%d, 3" % (sT0, sW))
    A("s_lshl_b32 s%d, s%d, 5" % (sT0, sT0))
    V.issue("gate", "buffer_load_ushort v%d, v15, s[16:19], s%d offen" % (VGT, sT0))
    A("v_lshlrev_b32 v24, 6, v24")
    A("v_lshl_add_u32 v24, v3, 13, v24")
    A("s_lshr_b32 s%d, s%d, 2" % (sT0, sM4))
    A("s_add_u32 s%d, s%d, %d" % (sT0, sT0, LB + 48))
    A("v_add_u32 v%d, s%d, v24" % (VGP, sT0))
    A("s_cmp_ge_u32 s%d, 7" % sT3)
    A("s_cselect_b32 s%d, 7, 0" % sT0)
    A("s_sub_u32 s%d, s%d, s%d" % (sCQ, sT3, sT0))
    A("s_lshl_b32 s%d, s%d, 4" % (sOP, sKVB))
    A("s_lshl_b32 s%d, s%d, 11" % (sT0, sHB))
    A("s_add_u32 s%d, s%d, s%d" % (sOP, sOP, sT0))
    A("s_add_u32 s%d, s%d, %d" % (sOP, sOP, WS_O))
    A("s_lshr_b32 s%d, s%d, 3" % (sFOP, sKVB))
    A("s_lshr_b32 s%d, s%d, 3" % (sT1, sHB))
    A("s_lshl_b32 s%d, s%d, 7" % (sT1, sT1))
    A("s_add_u32 s%d, s%d, s%d" % (sFOP, sFOP, sT1))
    A("s_and_b32 s%d, s%d, 7" % (sT1, sHB))
    A("s_lshl_b32 s%d, s%d, 3" % (sT1, sT1))
    A("s_add_u32 s%d, s%d, s%d" % (sFOP, sFOP, sT1))
    A("s_add_u32 s%d, s%d, %d" % (sFOP, sFOP, WS_FO))
    A("s_lshl_b32 s%d, s%d, 18" % (sKVH, sHB))
    A("s_add_u32 s%d, s%d, s%d" % (sKVB, sKVB, sKVH))
    A("s_mov_b32 s%d, 0xfe" % sPEND)
    A("s_lshl_b32 s%d, s%d, 3" % (sFKV, sHB))
    A("s_add_u32 s%d, s%d, s%d" % (sFKV, sFKV, sW))
    A("s_lshl_b32 s%d, s%d, 10" % (sFKV, sFKV))
    A("s_add_u32 s%d, s%d, %d" % (sFKV, sFKV, WS_FKV))
    A("s_getreg_b32 s%d, hwreg(HW_REG_XCC_ID, 0, 8)" % sXC)
    A("s_lshl_b32 s%d, s%d, 24" % (sXC, sXC))
    A("s_lshl_b32 s%d, s%d, 8" % (sXT, sQB))
    A("s_add_u32 s%d, s%d, %d" % (sXT, sXT, WS_XT))
    A("s_mov_b32 s%d, %s" % (sQS, f32(QSCALE)))
    A("s_mov_b32 s%d, %s" % (sQS + 1, f32(QSCALE)))
    A("s_cmp_ge_u32 s%d, 16" % sHB)
    A("s_cselect_b32 s%d, -1.0, 1.0" % sGA)
    A("s_cselect_b32 s%d, 1.0, 0" % sGB)
    A("s_and_b32 s%d, s2, 7" % sTB)
    A("s_lshl_b32 s%d, s%d, 2" % (sTB, sTB))
    A("s_bfe_u32 s%d, s2, 0x20003" % sT0)
    A("s_add_u32 s%d, s%d, s%d" % (sTB, sTB, sT0))
    A("s_lshr_b32 s%d, s2, 5" % sNB)
    A("s_bfe_u32 s%d, s%d, 0x10001" % (sT0, sW))
    A("s_mul_i32 s%d, s%d, %d" % (sWOB_, sT0, 224 * 896))
    A("s_and_b32 s%d, s%d, 1" % (sT0, sW))
    A("s_mul_i32 s%d, s%d, %d" % (sT0, sT0, 56 * 896))
    A("s_add_u32 s%d, s%d, s%d" % (sWOB_, sWOB_, sT0))
    A("s_min_u32 s%d, s%d, 6" % (sT0, sNB))
    A("s_lshl_b32 s%d, s%d, 7" % (sT0, sT0))
    A("s_add_u32 s%d, s%d, s%d" % (sWOB_, sWOB_, sT0))
    A("s_lshr_b32 s%d, s%d, 2" % (sT0, sW))
    A("s_and_b32 s%d, s%d, 3" % (sT1, sW))
    A("s_lshl_b32 s%d, s%d, 15" % (sMWO, sT0))
    A("s_mul_i32 s%d, s%d, 7168" % (sT3, sT1))
    A("s_add_u32 s%d, s%d, s%d" % (sMWO, sMWO, sT3))
    A("s_add_u32 s%d, s%d, %d" % (sMWO, sMWO, LE))
    A("s_lshl_b32 s%d, s%d, 3" % (sT3, sTB))
    A("s_add_u32 s%d, s%d, s%d" % (sT3, sT3, sW))
    A("s_lshl_b32 s%d, s%d, 7" % (sFOC, sT3))
    A("s_add_u32 s%d, s%d, %d" % (sFOC, sFOC, WS_FO))
    A("s_lshl_b32 s%d, s%d, 14" % (sOC, sT3))
    A("s_add_u32 s%d, s%d, %d" % (sOC, sOC, WS_O))
    A("s_lshr_b32 s%d, s%d, 1" % (sT0, sT1))
    A("s_lshl_b32 s%d, s%d, 15" % (sT0, sT0))
    A("s_and_b32 s%d, s%d, 1" % (sT1, sT1))
    A("s_mul_i32 s%d, s%d, 14336" % (sT1, sT1))
    A("s_add_u32 s%d, s%d, s%d" % (sT0, sT0, sT1))
    A("s_add_u32 s%d, s%d, %d" % (sT0, sT0, LE))
    A("v_bfe_u32 v3, v%d, 2, 2" % VLN)
    A("v_bfe_u32 v5, v%d, 4, 1" % VLN)
    A("v_lshlrev_b32 v5, 5, v5")
    A("v_lshl_add_u32 v3, v3, 6, v5")
    A("v_and_b32 v5, 3, v%d" % VLN)
    A("v_lshl_add_u32 v3, v5, 3, v3")
    A("v_add_u32 v3, s%d, v3" % sT0)
    A("v_lshrrev_b32 v5, 5, v%d" % VLN)
    A("v_lshl_add_u32 v%d, v5, 8, v3" % VTE)
    A("v_mul_u32_u24 v5, 768, v5")
    A("v_add_u32 v%d, v5, v3" % VTO)
    A("v_bfe_u32 v3, v%d, 2, 3" % VLN)
    A("v_mul_u32_u24 v3, 896, v3")
    A("v_lshrrev_b32 v5, 5, v%d" % VLN)
    A("v_lshl_add_u32 v3, v5, 6, v3")
    A("v_and_b32 v5, 3, v%d" % VLN)
    A("v_lshl_add_u32 v124, v5, 4, v3")
    A("v_lshlrev_b32 v%d, 4, v%d" % (VL16, VLN))
    A("v_and_b32 v3, 31, v%d" % VLN)
    A("v_lshrrev_b32 v24, 5, v%d" % VLN)
    A("v_bfe_u32 v25, v%d, 1, 3" % VLN)
    A("v_xor_b32 v25, v25, v24")
    A("v_lshlrev_b32 v25, 4, v25")
    A("v_lshl_add_u32 v25, v3, 7, v25")
    A("v_add_u32 v%d, s%d, v25" % (XA, sM4))
    for ks in range(1, 4):
        A("v_xor_b32 v%d, %d, v%d" % (XA + ks, ks * 32, XA))
    A("v_bfe_u32 v25, v%d, 2, 2" % VLN)
    A("v_lshl_add_u32 v25, v24, 3, v25")
    A("v_bfe_u32 v26, v%d, 4, 1" % VLN)
    A("v_lshlrev_b32 v26, 5, v26")
    A("v_lshl_add_u32 v25, v25, 6, v26")
    A("v_and_b32 v26, 3, v%d" % VLN)
    A("v_lshl_add_u32 v25, v26, 3, v25")
    A("v_add_u32 v%d, %d, v25" % (WA, LWK))
    A("v_add_u32 v%d, %d, v25" % (WQ, LB))
    A("v_cmp_gt_u32 %s, 32, v%d" % (sr(sLOW, 2), VLN))
    A("v_cmp_eq_u32 %s, 24, v3" % sr(sL24, 2))
    A("s_lshr_b32 s%d, s%d, 2" % (sT0, sW))
    A("s_lshl_b32 s%d, s%d, 14" % (sT0, sT0))
    A("v_add_u32 v%d, s%d, v%d" % (VKA, sT0, VL16))
    A("v_add_u32 v%d, %d, v%d" % (VKD, LD, VKA))
    A("v_add_u32 v3, s%d, v%d" % (sQB, VLN))
    A("v_and_b32 v3, 7, v3")
    A("v_lshlrev_b32 v123, %d, v3" % FSH)
    A("v_and_b32 v3, 7, v%d" % VLN)
    A("v_lshlrev_b32 v3, 11, v3")
    A("v_mov_b32 v24, 0x3f80")
    A("v_mov_b32 v25, 0x3f803f80")
    A("v_add_u32 v26, s%d, v%d" % (sM4, VL16))
    A("s_lshr_b32 s%d, s%d, 1" % (sT0, sM4))
    A("s_add_u32 s%d, s%d, %d" % (sT0, sT0, LE))
    A("s_xor_b32 s%d, s%d, 8192" % (sT1, sT0))
    A("s_add_u32 s%d, s%d, %d" % (sGO, sM4, LC))
    A("v_mov_b32 v%d, 0" % VFC)
    A("v_mov_b32 v%d, 0" % (VFC + 1))
    A("v_add_u32 v28, s%d, v%d" % (sT0, VL16))
    A("v_add_u32 v27, s%d, v%d" % (sT1, VL16))
    if OPT["g1"] == "early":
        for f in wpieces(1)[1:]:
            f()
    else:
        for f in wpieces(1) + xpieces(1):
            f()

    if OPT["pf"] == "late":
        A("s_getpc_b64 s[54:55]")
        A.label("Lpc")
        A("s_lshr_b32 s%d, s2, 3" % sT0)
        A("s_mul_i32 s%d, s%d, 768" % (sT0, sT0))
        A("v_min_u32 v29, 5, v%d" % VLN)
        A("v_lshlrev_b32 v29, 7, v29")
        A("v_add_u32 v29, s%d, v29" % sT0)
        A("v_min_u32 v29, Lcode_end-Lpc-4, v29")
        V.issue("pf", "global_load_dword v30, v29, s[54:55]")
    for c in OPT["tlb"] or "":
        if c == "k":
            A("v_lshlrev_b32 v29, 4, v3")
            V.issue("tlb", "buffer_load_dword v30, v29, s[12:15], s%d offen sc1" % sKVH)
        if c == "K":
            V.issue("tlb", "buffer_load_dword v30, v%d, s[12:15], s%d offen sc1" % (VFO, sKVB))
        if c == "f":
            V.issue("tlb", "buffer_load_dword v30, v%d, s[12:15], s%d offen sc1" % (VFO, sFKV))
        if c == "o":
            V.issue("tlb", "buffer_load_dword v30, v%d, s[12:15], s%d offen sc1" % (VFO, sOP))
        if c == "c":
            V.issue("tlb", "buffer_load_dword v30, v3, s[12:15], s%d offen sc1" % sOC)
        if c == "w":
            V.issue("tlb", "buffer_load_dword v30, v%d, %s, s%d offen" % (VFO, sr(SWO, 4), sWOB_))
        if c == "y":
            V.issue("tlb", "buffer_load_dword v30, v%d, s[28:31], s%d offen sc1" % (VFO, sXB))

    AK, AV, AQ = 32, 48, 64

    def poll(reg, sa=sFKV, va=123):
        return "buffer_load_dwordx2 %s, v%d, s[12:15], s%d offen sc1" % (vr(reg, 2), va, sa)

    def flag(sa, reg=VN, tag="flag"):
        A("s_mov_b64 exec, 1")
        V.issue(tag, "buffer_store_dwordx2 %s, v%d, s[12:15], s%d offen sc1" % (vr(reg, 2), VFO, sa))
        A("s_mov_b64 exec, -1")

    def kvpick(j):
        A("s_ff1_i32_b32 s%d, s%d" % (sT0, sT0))
        if j is None:
            A("s_mov_b32 m0, s%d" % sGO)
            A("s_add_u32 s%d, s%d, 32768" % (sGO, sGO))
        else:
            A("s_add_u32 m0, s%d, %d" % (sM4, RING[j % 3]))
        A("s_bitset0_b32 s%d, s%d" % (sPEND, sT0))
        A("s_lshl_b32 s%d, s%d, 15" % (sT0, sT0))
        A("s_add_u32 s%d, s%d, s%d" % (sT0, sT0, sKVB))
        A("s_and_b32 s%d, s%d, 0x3ffff" % (sT0, sT0))
        A("s_or_b32 s%d, s%d, s%d" % (sKS, sT0, sKVH))

    def kvld(p):
        return "buffer_load_dwordx4 v%d, s[12:15], s%d offen offset:%d sc1 lds" % (VL16, sKS, p * 1024)

    def kvdma():
        kvpick(None)
        for p in range(4):
            A(kvld(p))

    def wold(stage, g):
        if g in (0, 4):
            A("s_add_u32 m0, s%d, %d" % (sMWO, g * 1024))
        A("s_add_u32 s%d, s%d, %d" % (sT0, sWOB_, stage * 112 * 896 + g * 7168 - (g & 3) * 1024))
        V.issue(("wo", stage), "buffer_load_dwordx4 v124, %s, s%d offen offset:%d lds" % (sr(SWO, 4), sT0, (g & 3) * 1024))

    def xcc_put():
        A("s_lshl_b32 s%d, s%d, 3" % (sT0, sHB))
        A("v_mov_b32 v%d, v%d" % (VFA, VN))
        A("v_xor_b32 v%d, s%d, v%d" % (VFA + 1, sXC, VN + 1))
        A("s_add_u32 s%d, s%d, s%d" % (sT0, sT0, sXT))
        flag(sT0, VFA, "xput")

    def oprobe():
        A("buffer_load_dword v4, v3, s[12:15], s%d offen offset:2044 sc1" % sOC)

    HOOKS = OPT["hk"].split(".")
    pstate = dict(n=0)

    def hook(nm):
        if nm == OPT["kf"]:
            assert pstate["n"] == 0
            V.need("kv")
            flag(sDONE)
            if OPT["kvs"] == "late":
                for p in range(4):
                    V.issue("kv2", "buffer_store_dwordx4 %s, v%d, s[12:15], s%d offen offset:%d" % (vr(K0 + 4 * p, 4), VL16, sKVB, p * 1024))
            if TS and not OPT["tsb"]:
                A("s_memtime s[96:97]")
                L.drain()
                A("s_mov_b32 s%d, s96" % (STS + 4))
        if nm not in HOOKS:
            return
        idx = pstate["n"]
        pstate["n"] += 1
        if idx == 0:
            A(poll(VFC))
            return
        A("s_cmp_ge_u32 s%d, %d" % (sGO, LE))
        A("s_cbranch_scc1 Lchk_%d" % idx)
        A("v_cmp_eq_u64 %s, %s, %s" % (sr(sFM, 2), vr(VFC, 2), vr(VN, 2)))
        A("s_and_b32 s%d, s%d, s%d" % (sT0, sFM, sPEND))
        A("s_cbranch_scc1 Lgo_%d" % idx)
        A.label("Lgo_%d_ret" % idx)
        if nm != OPT["xp"]:
            A(poll(VFC))
        A.label("Lchk_%d" % idx)
        if nm == OPT["xp"]:
            A(poll(VFC))
        tail.append(("go", idx))

    QP = OPT["qp"].split(".")
    QP += [""] * (8 - len(QP))
    assert sorted("".join(QP)) == list("0123456")
    LO = int(OPT["lo"])
    items = []
    barpos = {}
    for i in range(8):
        barpos[i] = max(len(items) - (LO if i < 7 else 0), 0)
        if i < 7:
            items += [(sec, i, ks, i) for ks in range(4) for sec in ("K", "V")]
        for c in QP[i]:
            c = int(c)
            av = max(min(WQG[c >> 1] + 1, 7), c)
            assert av <= i, (c, i)
            items += [("Q", c, ks, av) for ks in range(4)]
    needbar7 = any(it[3] > 6 for it in items)
    bufs = [80, 84, 88, 92, 240, 244, 248, 252]
    st_ = dict(rd=0, bar=-1)
    bufof = {}
    first = dict(K=True, V=True, Q=True)

    def pump(ex):
        while st_["rd"] < len(items) and bufs and items[st_["rd"]][3] <= st_["bar"] and st_["rd"] - ex < int(OPT["look"]):
            n = st_["rd"]
            kind, c, ks, _ = items[n]
            b = bufs.pop(0)
            bufof[n] = b
            base, off = (WQ, 0) if kind == "Q" else (WA, WSEC if kind == "V" else 0)
            for t in range(2):
                L.issue(("w", n), "ds_read_b64_tr_b16 %s, v%d offset:%d" % (vr(b + 2 * t, 2), base, off + c * 4096 + ks * 1024 + t * 256))
            st_["rd"] += 1

    def item(n):
        kind, c, ks, _ = items[n]
        pump(n)
        L.need(("x", c, ks))
        L.need(("w", n))
        x, b = XF + 16 * c + 4 * ks, bufof[n]
        acc = dict(K=AK, V=AV, Q=AQ)[kind]
        cc = "0" if first[kind] else vr(acc, 16)
        first[kind] = False
        if kind == "V":
            mf(acc, x, b, cc)
        else:
            mf(acc, b, x, cc)
        bufs.append(b)
        pump(n + 1)

    def patch(p):
        A("s_mov_b64 exec, 0x%x" % (0xffff << (16 * p)) if p < 2 else "s_mov_b32 exec_lo, 0")
        if p >= 2:
            A("s_mov_b32 exec_hi, 0x%x" % (0xffff << (16 * (p - 2))))
        L.issue("g", "ds_write_b16 v%d, v%d" % (VGP, VGT))
        A("s_mov_b64 exec, -1")

    vq = []
    for i in range(7):
        for f in vq:
            f()
        V.need(("G", i))
        L.need("g")
        A("s_barrier")
        st_["bar"] = i
        if OPT["tsb"] == "a":
            if i:
                A("s_mov_b32 s%d, s96" % (STS + i))
            if i < 6:
                A("s_memtime s[96:97]")
        elif i == 0:
            stamp(1)
        for ks in range(4):
            L.issue(("x", i, ks), "ds_read_b128 %s, v%d offset:%d" % (vr(XF + 16 * i + 4 * ks, 4), XA + ks, XSLOT[i & 1]))
            if ks == 0:
                pump(barpos[i])
        for p in range(4):
            if WQG[p] == i:
                patch(p)
        vq = wpieces(i + 2)
        xq = xpieces(i + 2)
        if i == 2:
            vq.append(lambda: V.issue("n", "buffer_load_dwordx2 %s, v%d, s[32:35], 0 offen sc1" % (vr(VN, 2), VFO)))
        if vq:
            vq.pop(0)()
        for n in range(barpos[i], barpos[i + 1]):
            item(n)
            if xq and items[n][0] == "V" and items[n][1] == i:
                L.need(("x", i, 3))
                vq += xq
                xq = []
            if vq:
                vq.pop(0)()
        assert not xq
    assert not vq
    stamp(2)
    rest = list(range(barpos[7], len(items)))
    if needbar7:
        pre, rest = [n for n in rest if items[n][3] <= 6], [n for n in rest if items[n][3] > 6]
        assert not pre or pre[-1] < rest[0]
    else:
        pre, rest = rest, []

    def fill(k, nop=0):
        for _ in range(k):
            if pre:
                item(pre.pop(0))
                nop -= 8
        if nop > 0:
            A("s_nop %d" % (nop - 1))
    A("s_lshl_b32 s%d, s%d, %d" % (sDONE, sQB, FSH))
    A("s_add_u32 s%d, s%d, s%d" % (sDONE, sDONE, sFKV))
    fill(2, 10)
    for r in range(8):
        A("v_cvt_pk_bf16_f32 v%d, v%d, v%d" % (K0 + r, AK + 2 * r, AK + 2 * r + 1))
    A("v_cndmask_b32 v%d, v%d, v24, %s" % (K0 + 6, K0 + 6, sr(sLOW, 2)))
    A("v_cndmask_b32 v%d, v%d, 0, %s" % (K0 + 7, K0 + 7, sr(sLOW, 2)))
    for p in range(2):
        V.issue("kv", "buffer_store_dwordx4 %s, v%d, s[12:15], s%d offen offset:%d %s" % (vr(K0 + 4 * p, 4), VL16, sKVB, p * 1024, "" if OPT["kvs"] == "no" else "sc1"))
    fill(1)
    for r in range(8):
        A("v_cvt_pk_bf16_f32 v%d, v%d, v%d" % (V0 + r, AV + 2 * r, AV + 2 * r + 1))
    fill(1)
    for r in range(8):
        A("v_cndmask_b32 v%d, v%d, v25, %s" % (V0 + r, V0 + r, sr(sL24, 2)))
    for p in range(2, 4):
        V.issue("kv", "buffer_store_dwordx4 %s, v%d, s[12:15], s%d offen offset:%d %s" % (vr(K0 + 4 * p, 4), VL16, sKVB, p * 1024, "" if OPT["kvs"] == "no" else "sc1"))
    if OPT["kvs"] == "both":
        for p in range(4):
            V.issue("kv2", "buffer_store_dwordx4 %s, v%d, s[12:15], s%d offen offset:%d" % (vr(K0 + 4 * p, 4), VL16, sKVB, p * 1024))
    V.need("n")
    A("v_cmp_eq_u64 vcc, 0, %s" % vr(VN, 2))
    if needbar7:
        V.need(("G", 7))
        for p in range(4):
            if WQG[p] == 7:
                patch(p)
    for p in range(4):
        L.issue("kv", "ds_write_b128 v26, %s offset:%d" % (vr(K0 + 4 * p, 4), LA + p * 1024))
        fill(1)
    A("s_cbranch_vccnz Lnonce_wait")
    A.label("Lnonce_ok")
    tail.append(("nonce",))
    fill(99)
    if needbar7:
        L.need("g")
        A("s_barrier")
        st_["bar"] = 8
        for k, n in enumerate(rest):
            item(n)
            hook("q%d" % k)
    stamp(3)
    hook("e0")
    A("s_nop 11")
    A("v_mul_f32 v%d, %s, v%d" % (VG, f32(-LOG2E), AQ + 12))
    for r in range(8):
        A("v_pk_mul_f32 %s, %s, %s" % (vr(AQ + 2 * r, 2), vr(AQ + 2 * r, 2), sr(sQS, 2)))
    A("v_exp_f32 v%d, v%d" % (VG, VG))
    for r in range(8):
        A("v_cvt_pk_bf16_f32 v%d, v%d, v%d" % (QA + r, AQ + 2 * r, AQ + 2 * r + 1))
    A("v_cndmask_b32 v%d, v%d, 0, %s" % (QA + 6, QA + 6, sr(sLOW, 2)))
    A("v_add_f32 v%d, 1.0, v%d" % (VG, VG))
    mf(S[1], K0, QA, "0")
    mf(S[1], K1, QA + 4, vr(S[1], 16))
    L.issue("qx", "ds_write_b128 v28, %s" % vr(QA, 4))
    A("v_rcp_f32 v%d, v%d" % (VG, VG))
    A("v_mov_b32 v24, s%d" % sGB)
    A("v_and_b32 v122, 31, v%d" % VLN)
    A("v_fma_f32 v%d, s%d, v%d, v24" % (VG, sGA, VG))
    A("v_lshlrev_b32 v122, 3, v122")
    hook("e1")
    A("s_nop 6")
    s = S[1]
    A("v_max3_f32 v%d, v%d, v%d, v%d" % (E, s, s + 1, s + 2))
    A("v_max3_f32 v%d, v%d, v%d, v%d" % (E + 1, s + 3, s + 4, s + 5))
    A("v_max3_f32 v%d, v%d, v%d, v%d" % (E + 2, s + 6, s + 7, s + 8))
    A("v_max3_f32 v%d, v%d, v%d, v%d" % (E + 3, s + 9, s + 10, s + 11))
    A("v_max3_f32 v%d, v%d, v%d, v%d" % (E, E, s + 12, s + 13))
    A("v_max3_f32 v%d, v%d, v%d, v%d" % (E + 1, E + 1, s + 14, s + 15))
    A("v_max3_f32 v%d, v%d, v%d, v%d" % (E, E, E + 2, E + 3))
    A("v_max_f32 v%d, v%d, v%d" % (E, E, E + 1))
    A("v_mov_b32 v%d, v%d" % (E + 1, E))
    A("s_nop 1")
    A("v_permlane32_swap_b32 v%d, v%d" % (E, E + 1))
    A("s_nop 1")
    A("v_max_f32 v%d, v%d, v%d" % (E, E, E + 1))
    A("v_cvt_pk_bf16_f32 v%d, -v%d, 0" % (E, E))
    A("v_cndmask_b32 v%d, v%d, v%d, %s" % (QA + 6, QA + 6, E, sr(sLOW, 2)))
    L.issue("qx", "ds_write_b128 v28, %s offset:1024" % vr(QA + 4, 4))
    hook("p3")
    L.drain()
    A("s_barrier")
    stamp(5)
    if OPT["tsb"] == "s":
        stamp(1, True)

    def rd(tag, dst, i, part):
        sl = RING[(i >> 2) % 3]
        base, off = (VKD, 0) if sl == LD else (VKA, sl)
        L.issue(tag, "ds_read_b128 %s, v%d offset:%d" % (vr(dst, 4), base, off + (i & 3) * 4096 + part * 1024))

    rd("K0", K0, 0, 0)
    rd("K1", K1, 0, 1)
    L.issue("QB", "ds_read_b128 %s, v27" % vr(QB, 4))
    L.issue("QB", "ds_read_b128 %s, v27 offset:1024" % vr(QB + 4, 4))
    rd("V0", V0, 0, 2)
    hook("p3b")
    for r in range(4):
        A("v_mov_b32 v%d, -1" % (252 + r))
    L.need("K0")
    mf(S[0], K0, QA, "0")
    L.need("K1")
    mf(S[0], K1, QA + 4, vr(S[0], 16))
    L.need("QB")
    A("s_nop 7")
    Q = [QA, QB]
    assert needbar7
    vm = {}
    SP = int(OPT["sp"])
    for j in range(7):
        ops = []
        if j <= 4:
            ops += [(lambda p=p, j=j: V.issue(("kv", j + 3), kvld(p))) for p in range(4)]
        if j <= 1:
            ops.append(lambda: V.issue("poll", poll(VFC)))
        if j == 0:
            ops += [(lambda g=g: wold(0, g)) for g in range(7)]
        if j == 1:
            ops += [(lambda e=e: V.issue("pois", "buffer_store_dwordx4 v[252:255], v%d, s[12:15], s%d offen offset:%d sc1" % (VL16, sOP, e * 1024))) for e in range(2)]
            if OPT["ost"] == "dyn":
                ops.append(xcc_put)
        if j == 3:
            ops += [lambda: flag(sFOP)] + [(lambda g=g: wold(1, g)) for g in range(7)]
            if OPT["ost"] == "dyn":
                ops.append(lambda: V.issue("xget", "buffer_load_dwordx2 %s, v122, s[12:15], s%d offen sc1" % (vr(VFA, 2), sXT)))
        if j == 6:
            ops.append(lambda: V.issue("opoll", poll(VFC, sFOC, 122)))
        sl = 2 * (8 * j + 6)
        for k, o in enumerate(ops):
            vm.setdefault(sl, []).append(o)
            sl += SP if k < 4 else 1
        assert sl <= 2 * (8 * j + 14)
    vm.setdefault(2 * 63, []).append(oprobe)
    for u in range(64):
        j, st, i, a = u >> 3, u & 7, u >> 1, u & 1
        sc, sn = S[u & 1], S[(u + 1) & 1]

        def grp(g, pprev):
            if not (u == 0 and g == 0):
                A("v_cvt_pk_bf16_f32 v%d, v%d, v%d" % (pprev, E + 2, E + 3))
            for k in range(4):
                A("v_exp_f32 v%d, v%d" % (E + k, sc + 4 * g + k))
            A("v_cvt_pk_bf16_f32 v%d, v%d, v%d" % (P + 2 * g, E, E + 1))

        if st == 6:
            if j == 0:
                A("s_cmp_ge_u32 s%d, %d" % (sGO, LE))
                A("s_cbranch_scc0 Lspin0")
                A.label("Lspin0_ret")
                tail.append(("spin0",))
                V.q = [("kv", 1)] * 4 + [("kv", 2)] * 4
            for tag in {2: [("wo", 0)], 3: ["pois", "xput"], 5: [("wo", 1), "xget"], 7: ["opoll"]}.get(j, []) + [("kv", j + 1)]:
                if tag in V.q and not any(t2 in V.q[V.q.index(tag):] and t2 != tag and len(V.q) - V.q[::-1].index(t2) > len(V.q) - V.q[::-1].index(tag)
                                          for t2 in {2: [("wo", 0)], 3: ["pois", "xput"], 5: [("wo", 1), "xget"], 7: ["opoll"]}.get(j, [])):
                    V.need(tag)
            if j == 0 and OPT["tsb"] == "s":
                stamp(5, True)
            if j < 7:
                L.drain()
                A("s_barrier")
            if j == 0:
                stamp(7)
            elif OPT["tsb"] is True and j < 7:
                stamp(j, True)
        if u + 1 < 64:
            L.need("K0")
            mf(sn, K0, Q[(u + 1) & 1], "0")
            if a == 0 and i + 1 < 32:
                rd("K0", K0, i + 1, 0)
        if u == 0:
            A("s_nop 2")
        grp(0, P + 7)
        if u + 1 < 64:
            L.need("K1")
            mf(sn, K1, Q[(u + 1) & 1] + 4, vr(sn, 16))
            if a == 0 and i + 1 < 32:
                rd("K1", K1, i + 1, 1)
        grp(1, P + 1)
        if st == 6:
            if j <= 4:
                if j <= 2:
                    A("v_cmp_eq_u64 %s, %s, %s" % (sr(sFM, 2), vr(VFC, 2), vr(VN, 2)))
                A("s_and_b32 s%d, s%d, s%d" % (sT0, sFM, sPEND))
                A("s_cbranch_scc0 Lslow_%d" % j)
                A.label("Lslow_%d_ret" % j)
                tail.append(("slow", j))
                kvpick(j + 3)
            if j == 5:
                if OPT["ost"] == "dyn":
                    A("v_xor_b32 v%d, s%d, v%d" % (VFA + 1, sXC, VFA + 1))
                A("v_lshrrev_b32 v122, 8, v3")
                if OPT["ost"] == "dyn":
                    A("v_cmp_ne_u64 %s, %s, %s" % (sr(sXF, 2), vr(VFA, 2), vr(VN, 2)))
            if j == 7:
                A("v_cmp_ne_u64 vcc, %s, %s" % (vr(VFC, 2), vr(VN, 2)))
                A("s_cbranch_vccnz Lpois")
                A.label("Lpois_ret")
                tail.append(("pois",))
        for o in vm.get(2 * u, []):
            o()
        if u >= 1:
            t3 = ((u - 1) >> 1) & 3 == 3
            L.need("V1B" if t3 else "V1")
            mf(O[(u - 1) & 1], V1B if t3 else V1, P + 4, vr(O[(u - 1) & 1], 16))
        if a == 0 and i & 3 != 3:
            rd("V1", V1, i, 3)
        if st == 5:
            rd("V1B", V1B, i + 1, 3)
        grp(2, P + 3)
        L.need("V0")
        mf(O[u & 1], V0, P, "0" if u < 2 else vr(O[u & 1], 16))
        if a == 1 and i + 1 < 32:
            rd("V0", V0, i + 1, 2)
        for stage in range(2):
            q = u - (22 + 24 * stage)
            if 0 <= q < 7 and OPT["wo"]:
                for n in range(5 * q, min(5 * q + 5, 32)):
                    hl, s_, nt, t = n >> 3, (n >> 2) & 1, (n >> 1) & 1, n & 1
                    g0 = 7 * hl + (5 if (s_, t) == (1, 1) else 4 * s_ + 2 * t)
                    reg = 128 + 64 * stage + 2 * n
                    L.issue("wo", "ds_read_b64_tr_b16 %s, v%d offset:%d" % (
                        vr(reg, 2), VTO if g0 & 1 else VTE, (g0 >> 1) * 1024 + nt * 512 + (256 if g0 & 1 else 0)))
        grp(3, P + 5)
        for o in vm.get(2 * u + 1, []):
            o()
        if j == 0 and st <= 5:
            if OPT["tsb"] == "s" and st in (0, 2, 4, 5):
                stamp({0: 2, 2: 3, 4: 4, 5: 6}[st], True)
            hook("s%d" % st)
    A("v_cvt_pk_bf16_f32 v%d, v%d, v%d" % (P + 7, E + 2, E + 3))
    A("v_add_u32 v26, s%d, v%d" % (sM4, VL16))
    A("v_xor_b32 v27, 0x4000, v26")
    mf(O[1], V1B, P + 4, vr(O[1], 16))
    stamp(8)
    A("s_nop 11")
    for q in range(4):
        L.issue("ox", "ds_write_b128 v26, %s offset:%d" % (vr(O[1] + 4 * q, 4), LA + q * 1024))
    L.drain()
    A("s_barrier")
    for q in range(4):
        L.issue(("or", q), "ds_read_b128 %s, v27 offset:%d" % (vr(O[1] + 4 * q, 4), LA + q * 1024))
    A("v_mov_b32 v%d, 0" % E)
    A("v_mov_b32 v%d, 0" % (E + 1))
    A("v_mov_b32 v%d, %s" % (E + 2, f32(2.0 ** 100)))
    A("v_mov_b32 v%d, %s" % (E + 3, f32(2.0 ** -60)))
    Oa = O[0]
    for q in range(4):
        L.need(("or", q))
        for r in (4 * q, 4 * q + 2):
            A("v_pk_add_f32 %s, %s, %s" % (vr(Oa + r, 2), vr(Oa + r, 2), vr(O[1] + r, 2)))
    for r in range(0, 16, 2):
        A("v_pk_fma_f32 %s, %s, 0, %s" % (vr(E, 2), vr(Oa + r, 2), vr(E, 2)))
    A("v_cmp_nle_f32 vcc, v%d, v%d" % (Oa + 12, E + 2))
    A("v_cmp_nge_f32 %s, v%d, v%d" % (sr(sT0, 2), Oa + 12, E + 3))
    A("v_cmp_u_f32 %s, v%d, v%d" % (sr(sT2, 2), E, E + 1))
    A("s_or_b64 vcc, vcc, %s" % sr(sT0, 2))
    A("s_and_b64 vcc, vcc, %s" % sr(sLOW, 2))
    A("s_or_b64 vcc, vcc, %s" % sr(sT2, 2))
    A("s_cbranch_scc1 Lfallback")
    A.label("Lepi")
    A("v_rcp_f32 v%d, v%d" % (E, Oa + 12))
    A("s_add_u32 s%d, s%d, 4096" % (sT1, sOC))
    A("v_mul_f32 v%d, v%d, v%d" % (E, E, VG))
    A("s_add_u32 s%d, s%d, 8192" % (sT2, sOC))
    A("v_mov_b32 v%d, v%d" % (E + 1, E))
    A("s_add_u32 s%d, s%d, 12288" % (sT3, sOC))
    A("s_mov_b32 s%d, 0xff" % sPEND)
    A("v_permlane32_swap_b32 v%d, v%d" % (E, E + 1))
    def ostore(sc):
        for r in range(4):
            A("v_cvt_pk_bf16_f32 v%d, v%d, v%d" % (P + r, Oa + 2 * r, Oa + 2 * r + 1))
        A("buffer_store_dwordx4 %s, v%d, s[12:15], s%d offen %s" % (vr(P, 4), VL16, sOP, sc))
        for r in range(4, 8):
            A("v_cvt_pk_bf16_f32 v%d, v%d, v%d" % (P + r, Oa + 2 * r, Oa + 2 * r + 1))
        A("v_cndmask_b32 v%d, v%d, 0, %s" % (P + 6, P + 6, sr(sLOW, 2)))
        A("v_cndmask_b32 v%d, v%d, 0, %s" % (P + 7, P + 7, sr(sLOW, 2)))
        A("s_cmp_eq_u32 s%d, 7" % sNB)
        A("buffer_store_dwordx4 %s, v%d, s[12:15], s%d offen offset:1024 %s" % (vr(P + 4, 4), VL16, sOP, sc))
    A("s_cmp_lg_u64 %s, 0" % sr(sXF, 2))
    for r in range(0, 16, 2):
        A("v_pk_mul_f32 %s, %s, %s op_sel_hi:[1,0]" % (vr(Oa + r, 2), vr(Oa + r, 2), vr(E, 2)))
    if OPT["ost"] == "dyn":
        A("s_cbranch_scc1 Ldual_o")
        tail.append(("dual", "o", ostore))
        ostore("")
        A.label("Ldual_o_ret")
    else:
        ostore(OST)
    A("s_cbranch_scc1 %s" % ("Lflag_only" if TS else Lend))
    stamp(9)
    A("s_waitcnt vmcnt(2)")
    A("v_cmp_ne_u32 %s, -1, v4" % sr(sFM, 2))
    if OPT["osync"]:
        A("s_barrier")
    osrc = [sOC, sT1, sT2, sT3]

    def oissue(tag):
        A("s_and_b32 s%d, s%d, s%d" % (sL, sFM, sPEND))
        for hl in range(8):
            A("s_bitcmp0_b32 s%d, %d" % (sL, hl))
            A("s_cbranch_scc1 Loi%s_%d" % (tag, hl))
            for e in range(2):
                A("buffer_load_dwordx4 %s, v%d, s[12:15], s%d offen offset:%d sc1" % (
                    vr(64 + 8 * hl + 4 * e, 4), VL16, osrc[hl >> 1], (hl & 1) * 2048 + e * 1024))
            A.label("Loi%s_%d" % (tag, hl))
        oprobe()

    oissue("a")
    if TS and not OPT["tsb"] and OPT.get("ocnt"):
        A("s_bcnt1_i32_b32 s%d, s%d" % (STS + 6, sL))
    A("s_mov_b64 %s, -1" % sr(sOK, 2))
    A("s_mov_b32 s%d, 0x4000" % sSPIN)
    for r in range(0, 32, 2):
        A("v_mov_b64 %s, 0" % vr(32 + r, 2))
    A("v_and_b32 v11, 31, v%d" % VLN)
    A("v_lshrrev_b32 v19, 5, v%d" % VLN)
    A("v_and_b32 v10, 7, v%d" % VLN)
    A("v_xor_b32 v19, v19, v10")
    A("v_lshlrev_b32 v19, 4, v19")
    A("v_lshl_add_u32 v11, v11, 8, v19")
    A("s_lshl_b32 s%d, s%d, 13" % (sT0, sW))
    A("s_add_u32 s%d, s%d, %d" % (sT0, sT0, LD))
    A("v_add_u32 v12, s%d, v11" % sT0)
    for q in range(1, 4):
        A("v_xor_b32 v%d, %d, v12" % (12 + q, q * 32))
    A("v_lshrrev_b32 v11, 3, v%d" % VLN)
    A("v_lshlrev_b32 v19, 1, v10")
    A("v_xor_b32 v19, v19, v11")
    A("v_lshlrev_b32 v19, 4, v19")
    A("v_lshl_add_u32 v19, v11, 8, v19")
    A("s_and_b32 s%d, s%d, 3" % (sT0, sW))
    A("s_lshl_b32 s%d, s%d, 11" % (sT0, sT0))
    A("s_lshr_b32 s%d, s%d, 2" % (sKVB, sW))
    A("s_lshl_b32 s%d, s%d, 15" % (sKVB, sKVB))
    A("s_add_u32 s%d, s%d, s%d" % (sT0, sT0, sKVB))
    A("s_add_u32 s%d, s%d, %d" % (sT0, sT0, LD))
    A("v_add_u32 v16, s%d, v19" % sT0)
    A("v_xor_b32 v17, 16, v16")
    A("v_mul_u32_u24 v11, 896, v11")
    A("v_lshl_add_u32 v18, v10, 4, v11")
    A("s_lshl_b32 s%d, s%d, 3" % (sT0, sTB))
    A("s_add_u32 s%d, s%d, s%d" % (sT0, sT0, sW))
    A("s_mul_i32 s%d, s%d, %d" % (sT0, sT0, 8 * 896))
    A("s_lshl_b32 s%d, s%d, 7" % (sKVB, sNB))
    A("s_add_u32 s%d, s%d, s%d" % (sKS, sT0, sKVB))
    A.label("Leval")
    for hl in range(8):
        A("s_bitcmp0_b32 s%d, %d" % (sL, hl))
        A("s_cbranch_scc1 Lev_%d" % hl)
        thr = [t for t in (6, 4, 2, 1, 0) if t <= 7 - hl]
        if len(thr) > 1:
            A("s_lshr_b32 s%d, s%d, %d" % (sT0, sL, hl + 1))
            A("s_bcnt1_i32_b32 s%d, s%d" % (sT0, sT0))
        for t in thr:
            A("s_waitcnt vmcnt(%d)" % (2 * t + 1))
            if t:
                A("s_cmp_ge_u32 s%d, %d" % (sT0, t))
                A("s_cbranch_scc1 Lew_%d" % hl)
        A.label("Lew_%d" % hl)
        o = 64 + 8 * hl
        A("v_max3_u32 v8, v%d, v%d, v%d" % (o, o + 1, o + 2))
        A("v_max3_u32 v9, v%d, v%d, v%d" % (o + 3, o + 4, o + 5))
        A("v_max3_u32 v8, v8, v%d, v%d" % (o + 6, o + 7))
        A("v_max_u32 v8, v8, v9")
        A("v_cmp_eq_u32 vcc, -1, v8")
        A("s_and_b64 vcc, vcc, %s" % sr(sOK, 2))
        A("s_cbranch_scc1 Lev_%d" % hl)
        for e in range(2):
            for nt in range(2):
                mf(32 + 16 * nt, 128 + ((hl * 2 + e) * 2 + nt) * 4, 64 + 8 * hl + 4 * e, vr(32 + 16 * nt, 16))
        A("s_bitset0_b32 s%d, %d" % (sPEND, hl))
        A.label("Lev_%d" % hl)
    A("s_cmp_lg_u32 s%d, 0" % sPEND)
    A("s_cbranch_scc1 Loround")
    tail.append(("oround", oissue))
    if TS:
        A("s_sub_u32 s%d, 0x4000, s%d" % (STS + 10, sSPIN))
        A("s_add_u32 s%d, s%d, s%d" % (STS + 10, STS + 10, STS))
    stamp(11)
    A("s_nop 10")
    for nt in range(2):
        for q in range(4):
            L.issue("r", "ds_write_b128 v%d, %s offset:%d" % (12 + q, vr(32 + 16 * nt + 4 * q, 4), nt * 128))
    L.drain()
    A("s_barrier")
    for src in range(4):
        for e in range(2):
            L.issue(("s", src), "ds_read_b128 %s, v%d offset:%d" % (vr(64 + 8 * src + 4 * e, 4), 16 + e, src * 8192))
    for src in range(1, 4):
        L.need(("s", src))
        for r in range(0, 8, 2):
            A("v_pk_add_f32 %s, %s, %s" % (vr(64 + r, 2), vr(64 + r, 2), vr(64 + 8 * src + r, 2)))
    for r in range(4):
        A("v_cvt_pk_bf16_f32 v%d, v%d, v%d" % (24 + r, 64 + 2 * r, 65 + 2 * r))
    A("buffer_store_dwordx4 v[24:27], v18, s[28:31], s%d offen %s" % (sKS, OPT["osc"]))

    def ts_out():
        if not TS:
            return
        A("s_waitcnt vmcnt(0)")
        A("s_memtime s[96:97]")
        A("s_memrealtime s[100:101]")
        A("s_waitcnt lgkmcnt(0)")
        A("s_mov_b32 s%d, s96" % (STS + 12))
        A("s_mov_b32 s%d, s98" % (STS + 13))
        A("s_mov_b32 s%d, s100" % (STS + 14))
        A("s_getreg_b32 s%d, hwreg(HW_REG_XCC_ID)" % (STS + 15))
        if TS == "dbg":
            Ld = A.newlabel("dbg")
            A("s_not_b32 s98, s98")
            A("v_mov_b32 v32, s98")
            A("v_mov_b32 v33, s100")
            A("s_mov_b64 exec, 1")
            A("buffer_atomic_umax v32, v%d, s[32:35], 0 offen offset:8" % VFO)
            A("buffer_atomic_umax v33, v%d, s[32:35], 0 offen offset:12" % VFO)
            for r in range(1, 13):
                if r != 6:
                    A("s_sub_u32 s%d, s%d, s%d" % (STS + r, STS + r, STS))
                A("v_mov_b32 v%d, s%d" % (33 + r, STS + r))
            A("s_cmp_eq_u32 s%d, 7" % sNB)
            A("s_cbranch_scc1 %s" % Ld)
            for r in range(1, 13):
                A("buffer_atomic_umax v%d, v%d, s[32:35], 0 offen offset:%d" % (33 + r, VFO, 12 + 4 * r))
            A.label(Ld)
            return
        for r in range(16):
            A("v_mov_b32 v%d, s%d" % (32 + r, STS + r))
        A("s_lshl_b32 s64, s2, 3")
        A("s_add_u32 s64, s64, s%d" % sW)
        A("s_lshl_b32 s64, s64, 6")
        A("s_add_u32 s64, s64, %d" % WS_TS)
        A("s_mov_b64 exec, 1")
        for q in range(4):
            A("buffer_store_dwordx4 %s, v%d, s[12:15], s64 offen offset:%d" % (vr(32 + 4 * q, 4), VFO, q * 16))
    ts_out()
    A.label(Lend)
    A("s_endpgm")

    if TS:
        A.label("Lflag_only")
        stamp(9)
        ts_out()
        A("s_endpgm")

    for t in tail:
        if t[0] == "nonce":
            A.label("Lnonce_wait")
            A("s_mov_b32 s%d, 0x4000" % sSPIN)
            A.label("Lnonce_l")
            A("buffer_load_dwordx2 %s, v%d, s[32:35], 0 offen sc1" % (vr(VN, 2), VFO))
            A("s_waitcnt vmcnt(0)")
            A("v_cmp_eq_u64 vcc, 0, %s" % vr(VN, 2))
            A("s_cbranch_vccz Lnonce_ok")
            A("s_sub_u32 s%d, s%d, 1" % (sSPIN, sSPIN))
            A("s_cbranch_scc0 Lnonce_l")
            A("s_branch Lnonce_ok")
        elif t[0] == "go":
            A.label("Lgo_%d" % t[1])
            kvdma()
            if TS and not OPT["tsb"]:
                A("s_mov_b32 s%d, %d" % (STS + 6, t[1]))
            A("s_cmp_ge_u32 s%d, %d" % (sGO, LE))
            A("s_cbranch_scc1 Lchk_%d" % t[1])
            A("s_and_b32 s%d, s%d, s%d" % (sT0, sFM, sPEND))
            A("s_cbranch_scc1 Lgo_%d" % t[1])
            A("s_branch Lgo_%d_ret" % t[1])
        elif t[0] == "spin0":
            A.label("Lspin0")
            A("s_mov_b32 s%d, 0x4000" % sSPIN)
            A.label("Lspin0_l")
            A("s_waitcnt vmcnt(0)")
            A("v_cmp_eq_u64 %s, %s, %s" % (sr(sFM, 2), vr(VFC, 2), vr(VN, 2)))
            A("s_and_b32 s%d, s%d, s%d" % (sT0, sFM, sPEND))
            A("s_cbranch_scc1 Lspin0_go")
            A(poll(VFC))
            A("s_sub_u32 s%d, s%d, 1" % (sSPIN, sSPIN))
            A("s_cbranch_scc0 Lspin0_l")
            A("s_mov_b32 s%d, s%d" % (sT0, sPEND))
            A.label("Lspin0_go")
            kvdma()
            if TS and not OPT["tsb"]:
                A("s_mov_b32 s%d, 15" % (STS + 6))
            A("s_cmp_ge_u32 s%d, %d" % (sGO, LE))
            A("s_cbranch_scc1 Lspin0_ret")
            A("s_and_b32 s%d, s%d, s%d" % (sT0, sFM, sPEND))
            A("s_cbranch_scc1 Lspin0_go")
            A("s_branch Lspin0")
        elif t[0] == "slow":
            j = t[1]
            A.label("Lslow_%d" % j)
            A("s_mov_b32 s%d, 0x4000" % sSPIN)
            A.label("Lslow_%d_l" % j)
            A(poll(VFC))
            A("s_waitcnt vmcnt(0)")
            A("v_cmp_eq_u64 %s, %s, %s" % (sr(sFM, 2), vr(VFC, 2), vr(VN, 2)))
            A("s_and_b32 s%d, s%d, s%d" % (sT0, sFM, sPEND))
            A("s_cbranch_scc1 Lslow_%d_ret" % j)
            A("s_sub_u32 s%d, s%d, 1" % (sSPIN, sSPIN))
            A("s_cbranch_scc0 Lslow_%d_l" % j)
            A("s_mov_b32 s%d, s%d" % (sT0, sPEND))
            A("s_branch Lslow_%d_ret" % j)
        elif t[0] == "pois":
            A.label("Lpois")
            A("s_mov_b32 s%d, 0x4000" % sSPIN)
            A.label("Lpois_l")
            A(poll(VFC, sFOC, 122))
            A("s_waitcnt vmcnt(0)")
            A("v_cmp_ne_u64 vcc, %s, %s" % (vr(VFC, 2), vr(VN, 2)))
            A("s_cbranch_vccz Lpois_ret")
            A("s_sub_u32 s%d, s%d, 1" % (sSPIN, sSPIN))
            A("s_cbranch_scc0 Lpois_l")
            A("s_branch Lpois_ret")
        elif t[0] == "dual":
            A.label("Ldual_%s" % t[1])
            t[2]("sc1")
            A("s_branch Ldual_%s_ret" % t[1])
        elif t[0] == "oround":
            A.label("Loround")
            A("s_waitcnt vmcnt(0)")
            A("v_cmp_ne_u32 %s, -1, v4" % sr(sFM, 2))
            A("s_sub_u32 s%d, s%d, 1" % (sSPIN, sSPIN))
            A("s_cbranch_scc0 Loin")
            A("s_mov_b64 %s, 0" % sr(sOK, 2))
            A("s_mov_b32 s%d, 0xff" % sFM)
            A.label("Loin")
            t[1]("b")
            A("s_branch Leval")

    NM = S[1]
    A.label("Lfallback")
    A("v_cndmask_b32 v%d, v%d, 0, %s" % (QA + 6, QA + 6, sr(sLOW, 2)))
    A("v_mov_b32 v%d, 0xff800000" % E)
    A("s_lshl_b32 s%d, s%d, 18" % (sT0, sHB))
    A("s_mov_b32 s%d, 64" % sT1)
    A.label("Lfb1")
    A("buffer_load_dwordx4 %s, v%d, s[12:15], s%d offen sc1" % (vr(K0, 4), VL16, sT0))
    A("buffer_load_dwordx4 %s, v%d, s[12:15], s%d offen offset:1024 sc1" % (vr(K1, 4), VL16, sT0))
    A("s_waitcnt vmcnt(0)")
    mf(S[0], K0, QA, "0")
    mf(S[0], K1, QA + 4, vr(S[0], 16))
    A("s_nop 11")
    for r in range(0, 16, 2):
        A("v_max3_f32 v%d, v%d, v%d, v%d" % (E, E, S[0] + r, S[0] + r + 1))
    A("s_add_u32 s%d, s%d, 4096" % (sT0, sT0))
    A("s_sub_u32 s%d, s%d, 1" % (sT1, sT1))
    A("s_cmp_lg_u32 s%d, 0" % sT1)
    A("s_cbranch_scc1 Lfb1")
    A("v_mov_b32 v%d, v%d" % (E + 1, E))
    A("s_nop 1")
    A("v_permlane32_swap_b32 v%d, v%d" % (E, E + 1))
    A("s_nop 1")
    A("v_max_f32 v%d, v%d, v%d" % (E, E, E + 1))
    for r in range(16):
        A("v_sub_f32 v%d, 0, v%d" % (NM + r, E))
        A("v_mov_b32 v%d, 0" % (Oa + r))
    A("s_lshl_b32 s%d, s%d, 18" % (sT0, sHB))
    A("s_mov_b32 s%d, 64" % sT1)
    A.label("Lfb2")
    for k, reg in enumerate((K0, K1, V0, V1)):
        A("buffer_load_dwordx4 %s, v%d, s[12:15], s%d offen offset:%d sc1" % (vr(reg, 4), VL16, sT0, k * 1024))
    A("s_waitcnt vmcnt(0)")
    mf(S[0], K0, QA, vr(NM, 16))
    mf(S[0], K1, QA + 4, vr(S[0], 16))
    A("s_nop 11")
    for r in range(16):
        A("v_exp_f32 v%d, v%d" % (S[0] + r, S[0] + r))
    A("s_nop 0")
    for r in range(8):
        A("v_cvt_pk_bf16_f32 v%d, v%d, v%d" % (P + r, S[0] + 2 * r, S[0] + 2 * r + 1))
    A("s_nop 1")
    mf(Oa, V0, P, vr(Oa, 16))
    mf(Oa, V1, P + 4, vr(Oa, 16))
    A("s_add_u32 s%d, s%d, 4096" % (sT0, sT0))
    A("s_sub_u32 s%d, s%d, 1" % (sT1, sT1))
    A("s_cmp_lg_u32 s%d, 0" % sT1)
    A("s_cbranch_scc1 Lfb2")
    A("s_nop 11")
    A("s_branch Lepi")
    A("s_endpgm")
    A.label("Lcode_end")
    return name, descriptor(name, 256, 256, 102), "grid=(256,1,1) block=(512,1,1) lds=163840"


def main(out):
    A = Asm()
    n, d, l = gen(A)
    head = ["; gated dual-branch MHA block, single fused launch: QKV projection -> attention -> output projection",
            "; @launch kernel=%s %s" % (n, l),
            '.amdgcn_target "amdgcn-amd-amdhsa--gfx950"', ".text"]
    open(out, "w").write("\n".join(head) + "\n" + A.text() + '.section .rodata,"a"\n' + d + "\n")


if __name__ == "__main__":
    for a in sys.argv[2:]:
        k, _, v = a.partition("=")
        OPT[k] = {"": True, "0": False, "1": True}.get(v, v)
    main(sys.argv[1])
```

```python
import sys, math
sys.path.insert(0, "gen")
from gen import Asm, vr, sr, f32, kernel_begin, descriptor

NAME = "gated_mix__softmax_full_mha__mha_block__prompt"
LOG2E = math.log2(math.e)
QSCALE = (28.0 ** -0.5) * LOG2E

WS_KV = 0
WS_O = 8 << 20
WS_FKV = 13 << 20
WS_FO = (12 << 20) + 65536
WS_XT = (12 << 20) + 131072
WS_USED = 16 << 20
WS_TS = 64 << 20

LA, LC, LD, LE, LB = 0, 32768, 65536, 98304, 131072
LWK = 65536
WSEC = 28672
XSLOT = [LA, LC]
RING = [LA, LC, LD]

SX, SW, SWS, SG, SWO, SOUT, SDBG = 4, 8, 12, 16, 20, 28, 32
sW, sHB, sQB, sC, sXB, sWB, sM4, sMW = 56, 57, 58, 59, 60, 61, 62, 63
sT0, sT1, sT2, sT3 = 64, 65, 66, 67
sKVB, sDONE = 68, 69
sLOW, sL24, sFM = 70, 72, 74
sQS = 76
sSPIN, sWOB_, sNB, sTB = 78, 79, 3, 36
sMWO, sFKV, sCQ, sGA, sGB = 37, 38, 39, 40, 41
sPEND, sOP, sFOP, sFOC, sOC, sKVH = 42, 43, 44, 45, 46, 47
sKS, sL, sOK = 48, 49, 50
sGO = 52
sXC, sXT, sXF = 24, 25, 26
STS = 80

VL16, VLN = 1, 2
VN, VFA, VFC, VFO, VG, VXW = 126, 240, 4, 6, 7, 116
VTE, VTO = 0, 125
QA, QB, P = 8, 16, 24
S = [32, 48]
O = [64, 80]
K0, K1, V0, V1, E = 96, 100, 104, 108, 112
VKA, VKD = 120, 121
VGT = 122
XF = 128
VXD, VWD, XA, VWD2, VGP, WA, WQ = 8, 12, 16, 20, 21, 13, 14

OPT = dict(ts=False, rot="q2h", osc="", sp="1", osync=True, tsb=False, wo=True, ost="sc1", wq="7777", qp=".......0123456", lo="2", look="5", kf="q12", kp="e0", fsh="7", g1="late", tlb="", pf="late", hk="e1.p3b.s1.s2.s3.s4.s5", xp="s4", map="4x8", kvs="sc1", opr="63")


class VQ:
    def __init__(self, A):
        self.A = A
        self.q = []

    def issue(self, tag, ins):
        self.A(ins)
        self.q.append(tag)

    def need(self, tag):
        if tag not in self.q:
            return
        idx = len(self.q) - 1 - self.q[::-1].index(tag)
        self.A("s_waitcnt vmcnt(%d)" % (len(self.q) - 1 - idx))
        self.q = self.q[idx + 1:]


class LQ:
    def __init__(self, A):
        self.A = A
        self.q = []

    def issue(self, tag, ins):
        self.A(ins)
        self.q.append(tag)

    def need(self, tag):
        if tag not in self.q:
            return
        idx = len(self.q) - 1 - self.q[::-1].index(tag)
        n = len(self.q) - 1 - idx
        self.A("s_waitcnt lgkmcnt(%d)" % min(n, 15))
        self.q = self.q[idx + 1:]

    def drain(self):
        self.A("s_waitcnt lgkmcnt(0)")
        self.q = []


def gen(A):
    name = "fused_kernel"
    kernel_begin(A, name)
    L = LQ(A)
    TS = OPT["ts"]
    tail = []
    OST = "" if OPT["ost"] == "no" else "sc1"

    def stamp(i, bar=False):
        if TS and (bar or not (OPT["tsb"] and i < 7)):
            A("s_memtime s[96:97]")
            L.drain()
            A("s_mov_b32 s%d, s96" % (STS + i))

    def mf(d, a, b, c):
        A("v_mfma_f32_32x32x16_bf16 %s, %s, %s, %s" % (vr(d, 16), vr(a, 4), vr(b, 4), c))

    Lend = "Lend"
    V = VQ(A)
    FSH = int(OPT["fsh"])
    A("s_cmp_ge_u32 s2, 256")
    A("s_cbranch_scc1 %s" % Lend)
    A("s_load_dwordx16 s[36:51], s[0:1], 0")
    A("s_load_dwordx4 s[52:55], s[0:1], 64")
    A("s_memrealtime s[98:99]")
    if TS:
        A("s_memtime s[96:97]")
    A("v_lshrrev_b32 v3, 6, v0")
    A("v_and_b32 v%d, 63, v0" % VLN)
    if OPT["map"] == "32x1":
        A("s_lshr_b32 s%d, s2, 3 ; MAP32" % sHB)
        A("v_readfirstlane_b32 s%d, v3" % sW)
        A("s_and_b32 s%d, s2, 7" % sQB)
    elif OPT["map"] == "4x8":
        A("s_and_b32 s%d, s2, 7" % sHB)
        A("v_readfirstlane_b32 s%d, v3" % sW)
        A("s_lshl_b32 s%d, s%d, 2" % (sHB, sHB))
        A("s_bfe_u32 s%d, s2, 0x20003" % sT0)
        A("s_add_u32 s%d, s%d, s%d" % (sHB, sHB, sT0))
        A("s_lshr_b32 s%d, s2, 5" % sQB)
        assert OPT["ost"] == "sc1"
    elif OPT["map"] == "8x4":
        A("s_bfe_u32 s%d, s2, 0x20001 ; MAP84" % sHB)
        A("v_readfirstlane_b32 s%d, v3" % sW)
        A("s_lshl_b32 s%d, s%d, 3" % (sHB, sHB))
        A("s_bfe_u32 s%d, s2, 0x30003" % sT0)
        A("s_add_u32 s%d, s%d, s%d" % (sHB, sHB, sT0))
        A("s_and_b32 s%d, s2, 1" % sQB)
        A("s_lshl_b32 s%d, s%d, 2" % (sQB, sQB))
        A("s_lshr_b32 s%d, s2, 6" % sT0)
        A("s_add_u32 s%d, s%d, s%d" % (sQB, sQB, sT0))
        assert OPT["ost"] == "sc1"
    A("v_lshrrev_b32 v3, 3, v%d" % VLN)
    A("v_lshrrev_b32 v5, 4, v%d" % VLN)
    A("v_xor_b32 v5, v5, v%d" % VLN)
    A("v_and_b32 v5, 7, v5")
    A("v_mul_u32_u24 v3, 896, v3")
    A("v_lshl_add_u32 v%d, v5, 4, v3" % VXD)
    A("v_xor_b32 v5, 64, v%d" % VXD)
    A("v_add_u32 v%d, 6144, v5" % (VXD + 1))
    A("v_add_u32 v%d, 12288, v%d" % (VXD + 2, VXD))
    A("v_add_u32 v%d, 18432, v5" % (VXD + 3))
    A("v_lshrrev_b32 v3, 2, v%d" % VLN)
    A("v_mul_u32_u24 v3, 2688, v3")
    A("v_and_b32 v5, 3, v%d" % VLN)
    A("v_lshlrev_b32 v5, 4, v5")
    A("v_min_u32 v5, 40, v5")
    A("v_add_u32 v%d, v3, v5" % VWD)
    if OPT["rot"] == "q2h":
        A("s_lshl_b32 s%d, s%d, 1" % (sC, sHB))
        A("s_add_u32 s%d, s%d, s%d" % (sC, sC, sQB))
    elif OPT["rot"] == "q3h":
        A("s_mul_i32 s%d, s%d, 3" % (sC, sHB))
        A("s_add_u32 s%d, s%d, s%d" % (sC, sC, sQB))
    elif OPT["rot"] == "qh":
        A("s_add_u32 s%d, s%d, s%d" % (sC, sHB, sQB))
    elif OPT["rot"] == "3h":
        A("s_mul_i32 s%d, s%d, 3" % (sC, sHB))
    else:
        A("s_mov_b32 s%d, 0" % sC)
    A("s_mul_i32 s%d, s%d, 147" % (sT0, sC))
    A("s_lshr_b32 s%d, s%d, 10" % (sT0, sT0))
    A("s_mul_i32 s%d, s%d, 7" % (sT0, sT0))
    A("s_sub_u32 s%d, s%d, s%d" % (sC, sC, sT0))
    A("s_lshl_b32 s%d, s%d, 3" % (sXB, sQB))
    A("s_add_u32 s%d, s%d, s%d" % (sXB, sXB, sW))
    A("s_lshl_b32 s%d, s%d, 12" % (sKVB, sXB))
    A("s_mul_i32 s%d, s%d, %d" % (sXB, sXB, 32 * 896))
    A("s_lshl_b32 s%d, s%d, 12" % (sM4, sW))
    A("s_and_b32 s%d, s%d, 15" % (sT2, sHB))
    A("s_mul_i32 s%d, s%d, 56" % (sT2, sT2))
    A("s_lshr_b32 s%d, s%d, 2" % (sT0, sW))
    A("s_and_b32 s%d, s%d, 3" % (sT1, sW))
    A("s_mul_i32 s%d, s%d, %d" % (sDONE, sT1, 16 * 2688))
    A("s_add_u32 s%d, s%d, s%d" % (sDONE, sDONE, sT2))
    A("s_mul_i32 s%d, s%d, 896" % (sWB, sT0))
    A("s_add_u32 s%d, s%d, s%d" % (sWB, sWB, sDONE))
    A("s_add_u32 s%d, s%d, 896" % (sWB, sWB))
    A("s_mul_i32 s%d, s%d, %d" % (sMW, sT0, WSEC))
    A("s_lshl_b32 s%d, s%d, 10" % (sT1, sT1))
    A("s_add_u32 s%d, s%d, s%d" % (sMW, sMW, sT1))
    A("s_add_u32 s%d, s%d, s%d" % (sT3, sC, sT0))
    A("s_mov_b32 s%d, %d" % (SX + 2, 2048 * 896))
    A("s_mov_b32 s%d, 0x00020000" % (SX + 3))
    A("s_mov_b32 s%d, %d" % (SW + 2, 448 * 2688))
    A("s_mov_b32 s%d, 0x00020000" % (SW + 3))
    A("s_cmp_ge_u32 s%d, 16" % sHB)
    A("s_waitcnt lgkmcnt(0)")
    A("s_mov_b32 s%d, s36" % SX)
    A("s_mov_b32 s%d, s37" % (SX + 1))
    A("s_cselect_b32 s%d, s44, s38" % SW)
    A("s_cselect_b32 s%d, s45, s39" % (SW + 1))
    if TS:
        A("s_mov_b32 s%d, s96" % STS)

    WQG = [int(c) for c in OPT["wq"]]

    def gw(i):
        A("s_mul_i32 s%d, s%d, %d" % (sT1, sC, 64 * 2688))
        A("s_add_u32 m0, s%d, %d" % (sMW, LWK + i * 4096))
        A("s_add_u32 s%d, s%d, s%d" % (sT1, sT1, sWB))
        V.issue(("G", i), "buffer_load_dwordx4 v%d, s[8:11], s%d offen lds" % (VWD, sT1))

    def gq(p, i):
        A("s_mul_i32 s%d, s%d, %d" % (sT1, sCQ, 64 * 2688))
        A("s_lshr_b32 s%d, s%d, 2" % (sT0, sM4))
        A("s_add_u32 m0, s%d, %d" % (sT0, LB + p * 8192))
        A("s_add_u32 s%d, s%d, s%d" % (sT1, sT1, sDONE))
        V.issue(("G", i), "buffer_load_dwordx4 v%d, s[8:11], s%d offen lds" % (VWD if p < 3 else VWD2, sT1))
        if p < 3:
            A("s_add_u32 s%d, s%d, 2" % (sCQ, sCQ))
            A("s_cmp_ge_u32 s%d, 7" % sCQ)
            A("s_cselect_b32 s%d, 7, 0" % sT1)
            A("s_sub_u32 s%d, s%d, s%d" % (sCQ, sCQ, sT1))

    def gx(i, g):
        if g == 0:
            A("s_lshl_b32 s%d, s%d, 7" % (sT2, sC))
            A("s_add_u32 m0, s%d, %d" % (sM4, XSLOT[i & 1]))
            A("s_add_u32 s%d, s%d, s%d" % (sT2, sT2, sXB))
        V.issue(("G", i), "buffer_load_dwordx4 v%d, s[4:7], s%d offen offset:%d lds" % (VXD + g, sT2, g * 1024))
        if g == 3 and i < 6:
            A("s_add_u32 s%d, s%d, 1" % (sC, sC))
            A("s_cmp_eq_u32 s%d, 7" % sC)
            A("s_cselect_b32 s%d, 0, s%d" % (sC, sC))

    def wpieces(i):
        r = [lambda: gw(i)] if i < 7 else []
        return r + [(lambda p=p: gq(p, i)) for p in range(4) if WQG[p] == i]

    def xpieces(i):
        return [(lambda g=g: gx(i, g)) for g in range(4)] if i < 7 else []

    assert min(WQG) >= 1
    for f in wpieces(0) + xpieces(0):
        f()
    if OPT["g1"] == "early":
        gw(1)
        for f in xpieces(1):
            f()
    A("s_mov_b32 s%d, s52" % SDBG)
    A("s_mov_b32 s%d, s53" % (SDBG + 1))
    A("s_mov_b32 s%d, 256" % (SDBG + 2))
    A("s_mov_b32 s%d, 0x00020000" % (SDBG + 3))
    A("v_mov_b32 v%d, 0" % VFO)
    A("s_or_b32 s%d, s%d, s2" % (sT0, sW))
    A("s_cbranch_scc1 Lnononce")
    A("v_mov_b32 v%d, s98" % VN)
    A("v_mov_b32 v%d, s99" % (VN + 1))
    A("v_or_b32 v%d, 1, v%d" % (VN, VN))
    A("s_mov_b64 exec, 1")
    A("buffer_store_dwordx2 %s, v%d, s[32:35], 0 offen sc1" % (vr(VN, 2), VFO))
    A("s_mov_b64 exec, -1")
    A.label("Lnononce")
    for srd, k, size in ((SWS, 54, WS_USED if not TS else 128 << 20), (SG, 48, 896), (SOUT, 50, 2048 * 896)):
        A("s_mov_b32 s%d, s%d" % (srd, k))
        A("s_mov_b32 s%d, s%d" % (srd + 1, k + 1))
        A("s_mov_b32 s%d, %d" % (srd + 2, size))
        A("s_mov_b32 s%d, 0x00020000" % (srd + 3))
    A("s_cmp_ge_u32 s%d, 4" % sW)
    A("s_cselect_b32 s%d, s46, s40" % SWO)
    A("s_cselect_b32 s%d, s47, s41" % (SWO + 1))
    A("s_cselect_b32 s%d, 0, -1" % sT0)
    A("s_mov_b32 s%d, %d" % (SWO + 2, 448 * 896))
    A("s_mov_b32 s%d, 0x00020000" % (SWO + 3))
    A("v_and_b32 v%d, s%d, v%d" % (VWD2, sT0, VWD))
    A("v_lshrrev_b32 v3, 4, v%d" % VLN)
    A("v_lshl_add_u32 v5, v3, 1, s%d" % sT3)
    A("v_subrev_u32 v24, 7, v5")
    A("v_min_u32 v5, v5, v24")
    A("v_and_b32 v24, 15, v%d" % VLN)
    A("v_lshlrev_b32 v15, 1, v24")
    A("v_lshl_add_u32 v15, v5, 7, v15")
    A("s_and_b32 s%d, s%d, 3" % (sT0, sW))
    A("s_lshl_b32 s%d, s%d, 5" % (sT0, sT0))
    V.issue("gate", "buffer_load_ushort v%d, v15, s[16:19], s%d offen" % (VGT, sT0))
    A("v_lshlrev_b32 v24, 6, v24")
    A("v_lshl_add_u32 v24, v3, 13, v24")
    A("s_lshr_b32 s%d, s%d, 2" % (sT0, sM4))
    A("s_add_u32 s%d, s%d, %d" % (sT0, sT0, LB + 48))
    A("v_add_u32 v%d, s%d, v24" % (VGP, sT0))
    A("s_cmp_ge_u32 s%d, 7" % sT3)
    A("s_cselect_b32 s%d, 7, 0" % sT0)
    A("s_sub_u32 s%d, s%d, s%d" % (sCQ, sT3, sT0))
    A("s_lshl_b32 s%d, s%d, 4" % (sOP, sKVB))
    A("s_lshl_b32 s%d, s%d, 11" % (sT0, sHB))
    A("s_add_u32 s%d, s%d, s%d" % (sOP, sOP, sT0))
    A("s_add_u32 s%d, s%d, %d" % (sOP, sOP, WS_O))
    A("s_lshr_b32 s%d, s%d, 3" % (sFOP, sKVB))
    A("s_lshr_b32 s%d, s%d, 3" % (sT1, sHB))
    A("s_lshl_b32 s%d, s%d, 7" % (sT1, sT1))
    A("s_add_u32 s%d, s%d, s%d" % (sFOP, sFOP, sT1))
    A("s_and_b32 s%d, s%d, 7" % (sT1, sHB))
    A("s_lshl_b32 s%d, s%d, 3" % (sT1, sT1))
    A("s_add_u32 s%d, s%d, s%d" % (sFOP, sFOP, sT1))
    A("s_add_u32 s%d, s%d, %d" % (sFOP, sFOP, WS_FO))
    A("s_lshl_b32 s%d, s%d, 18" % (sKVH, sHB))
    A("s_add_u32 s%d, s%d, s%d" % (sKVB, sKVB, sKVH))
    A("s_mov_b32 s%d, 0xfe" % sPEND)
    A("s_lshl_b32 s%d, s%d, 3" % (sFKV, sHB))
    A("s_add_u32 s%d, s%d, s%d" % (sFKV, sFKV, sW))
    A("s_lshl_b32 s%d, s%d, 10" % (sFKV, sFKV))
    A("s_add_u32 s%d, s%d, %d" % (sFKV, sFKV, WS_FKV))
    A("s_getreg_b32 s%d, hwreg(HW_REG_XCC_ID, 0, 8)" % sXC)
    A("s_lshl_b32 s%d, s%d, 24" % (sXC, sXC))
    A("s_lshl_b32 s%d, s%d, 8" % (sXT, sQB))
    A("s_add_u32 s%d, s%d, %d" % (sXT, sXT, WS_XT))
    A("s_mov_b32 s%d, %s" % (sQS, f32(QSCALE)))
    A("s_mov_b32 s%d, %s" % (sQS + 1, f32(QSCALE)))
    A("s_cmp_ge_u32 s%d, 16" % sHB)
    A("s_cselect_b32 s%d, -1.0, 1.0" % sGA)
    A("s_cselect_b32 s%d, 1.0, 0" % sGB)
    A("s_and_b32 s%d, s2, 7" % sTB)
    A("s_lshl_b32 s%d, s%d, 2" % (sTB, sTB))
    A("s_bfe_u32 s%d, s2, 0x20003" % sT0)
    A("s_add_u32 s%d, s%d, s%d" % (sTB, sTB, sT0))
    A("s_lshr_b32 s%d, s2, 5" % sNB)
    A("s_bfe_u32 s%d, s%d, 0x10001" % (sT0, sW))
    A("s_mul_i32 s%d, s%d, %d" % (sWOB_, sT0, 224 * 896))
    A("s_and_b32 s%d, s%d, 1" % (sT0, sW))
    A("s_mul_i32 s%d, s%d, %d" % (sT0, sT0, 56 * 896))
    A("s_add_u32 s%d, s%d, s%d" % (sWOB_, sWOB_, sT0))
    A("s_min_u32 s%d, s%d, 6" % (sT0, sNB))
    A("s_lshl_b32 s%d, s%d, 7" % (sT0, sT0))
    A("s_add_u32 s%d, s%d, s%d" % (sWOB_, sWOB_, sT0))
    A("s_lshr_b32 s%d, s%d, 2" % (sT0, sW))
    A("s_and_b32 s%d, s%d, 3" % (sT1, sW))
    A("s_lshl_b32 s%d, s%d, 15" % (sMWO, sT0))
    A("s_mul_i32 s%d, s%d, 7168" % (sT3, sT1))
    A("s_add_u32 s%d, s%d, s%d" % (sMWO, sMWO, sT3))
    A("s_add_u32 s%d, s%d, %d" % (sMWO, sMWO, LE))
    A("s_lshl_b32 s%d, s%d, 3" % (sT3, sTB))
    A("s_add_u32 s%d, s%d, s%d" % (sT3, sT3, sW))
    A("s_lshl_b32 s%d, s%d, 7" % (sFOC, sT3))
    A("s_add_u32 s%d, s%d, %d" % (sFOC, sFOC, WS_FO))
    A("s_lshl_b32 s%d, s%d, 14" % (sOC, sT3))
    A("s_add_u32 s%d, s%d, %d" % (sOC, sOC, WS_O))
    A("s_lshr_b32 s%d, s%d, 1" % (sT0, sT1))
    A("s_lshl_b32 s%d, s%d, 15" % (sT0, sT0))
    A("s_and_b32 s%d, s%d, 1" % (sT1, sT1))
    A("s_mul_i32 s%d, s%d, 14336" % (sT1, sT1))
    A("s_add_u32 s%d, s%d, s%d" % (sT0, sT0, sT1))
    A("s_add_u32 s%d, s%d, %d" % (sT0, sT0, LE))
    A("v_bfe_u32 v3, v%d, 2, 2" % VLN)
    A("v_bfe_u32 v5, v%d, 4, 1" % VLN)
    A("v_lshlrev_b32 v5, 5, v5")
    A("v_lshl_add_u32 v3, v3, 6, v5")
    A("v_and_b32 v5, 3, v%d" % VLN)
    A("v_lshl_add_u32 v3, v5, 3, v3")
    A("v_add_u32 v3, s%d, v3" % sT0)
    A("v_lshrrev_b32 v5, 5, v%d" % VLN)
    A("v_lshl_add_u32 v%d, v5, 8, v3" % VTE)
    A("v_mul_u32_u24 v5, 768, v5")
    A("v_add_u32 v%d, v5, v3" % VTO)
    A("v_bfe_u32 v3, v%d, 2, 3" % VLN)
    A("v_mul_u32_u24 v3, 896, v3")
    A("v_lshrrev_b32 v5, 5, v%d" % VLN)
    A("v_lshl_add_u32 v3, v5, 6, v3")
    A("v_and_b32 v5, 3, v%d" % VLN)
    A("v_lshl_add_u32 v124, v5, 4, v3")
    A("v_lshlrev_b32 v%d, 4, v%d" % (VL16, VLN))
    A("v_and_b32 v3, 31, v%d" % VLN)
    A("v_lshrrev_b32 v24, 5, v%d" % VLN)
    A("v_bfe_u32 v25, v%d, 1, 3" % VLN)
    A("v_xor_b32 v25, v25, v24")
    A("v_lshlrev_b32 v25, 4, v25")
    A("v_lshl_add_u32 v25, v3, 7, v25")
    A("v_add_u32 v%d, s%d, v25" % (XA, sM4))
    for ks in range(1, 4):
        A("v_xor_b32 v%d, %d, v%d" % (XA + ks, ks * 32, XA))
    A("v_bfe_u32 v25, v%d, 2, 2" % VLN)
    A("v_lshl_add_u32 v25, v24, 3, v25")
    A("v_bfe_u32 v26, v%d, 4, 1" % VLN)
    A("v_lshlrev_b32 v26, 5, v26")
    A("v_lshl_add_u32 v25, v25, 6, v26")
    A("v_and_b32 v26, 3, v%d" % VLN)
    A("v_lshl_add_u32 v25, v26, 3, v25")
    A("v_add_u32 v%d, %d, v25" % (WA, LWK))
    A("v_add_u32 v%d, %d, v25" % (WQ, LB))
    A("v_cmp_gt_u32 %s, 32, v%d" % (sr(sLOW, 2), VLN))
    A("v_cmp_eq_u32 %s, 24, v3" % sr(sL24, 2))
    A("s_lshr_b32 s%d, s%d, 2" % (sT0, sW))
    A("s_lshl_b32 s%d, s%d, 14" % (sT0, sT0))
    A("v_add_u32 v%d, s%d, v%d" % (VKA, sT0, VL16))
    A("v_add_u32 v%d, %d, v%d" % (VKD, LD, VKA))
    A("v_add_u32 v3, s%d, v%d" % (sQB, VLN))
    A("v_and_b32 v3, 7, v3")
    A("v_lshlrev_b32 v123, %d, v3" % FSH)
    A("v_and_b32 v3, 7, v%d" % VLN)
    A("v_lshlrev_b32 v3, 11, v3")
    A("v_mov_b32 v24, 0x3f80")
    A("v_mov_b32 v25, 0x3f803f80")
    A("v_add_u32 v26, s%d, v%d" % (sM4, VL16))
    A("s_lshr_b32 s%d, s%d, 1" % (sT0, sM4))
    A("s_add_u32 s%d, s%d, %d" % (sT0, sT0, LE))
    A("s_xor_b32 s%d, s%d, 8192" % (sT1, sT0))
    A("s_add_u32 s%d, s%d, %d" % (sGO, sM4, LC))
    A("v_mov_b32 v%d, 0" % VFC)
    A("v_mov_b32 v%d, 0" % (VFC + 1))
    A("v_add_u32 v28, s%d, v%d" % (sT0, VL16))
    A("v_add_u32 v27, s%d, v%d" % (sT1, VL16))
    if OPT["g1"] == "early":
        for f in wpieces(1)[1:]:
            f()
    else:
        for f in wpieces(1) + xpieces(1):
            f()

    if OPT["pf"] == "late":
        A("s_getpc_b64 s[54:55]")
        A.label("Lpc")
        A("s_lshr_b32 s%d, s2, 3" % sT0)
        A("s_mul_i32 s%d, s%d, 768" % (sT0, sT0))
        A("v_min_u32 v29, 5, v%d" % VLN)
        A("v_lshlrev_b32 v29, 7, v29")
        A("v_add_u32 v29, s%d, v29" % sT0)
        A("v_min_u32 v29, Lcode_end-Lpc-4, v29")
        V.issue("pf", "global_load_dword v30, v29, s[54:55]")
    for c in OPT["tlb"] or "":
        if c == "k":
            A("v_lshlrev_b32 v29, 4, v3")
            V.issue("tlb", "buffer_load_dword v30, v29, s[12:15], s%d offen sc1" % sKVH)
        if c == "K":
            V.issue("tlb", "buffer_load_dword v30, v%d, s[12:15], s%d offen sc1" % (VFO, sKVB))
        if c == "f":
            V.issue("tlb", "buffer_load_dword v30, v%d, s[12:15], s%d offen sc1" % (VFO, sFKV))
        if c == "o":
            V.issue("tlb", "buffer_load_dword v30, v%d, s[12:15], s%d offen sc1" % (VFO, sOP))
        if c == "c":
            V.issue("tlb", "buffer_load_dword v30, v3, s[12:15], s%d offen sc1" % sOC)
        if c == "w":
            V.issue("tlb", "buffer_load_dword v30, v%d, %s, s%d offen" % (VFO, sr(SWO, 4), sWOB_))
        if c == "y":
            V.issue("tlb", "buffer_load_dword v30, v%d, s[28:31], s%d offen sc1" % (VFO, sXB))

    AK, AV, AQ = 32, 48, 64

    def poll(reg, sa=sFKV, va=123):
        return "buffer_load_dwordx2 %s, v%d, s[12:15], s%d offen sc1" % (vr(reg, 2), va, sa)

    def flag(sa, reg=VN, tag="flag"):
        A("s_mov_b64 exec, 1")
        V.issue(tag, "buffer_store_dwordx2 %s, v%d, s[12:15], s%d offen sc1" % (vr(reg, 2), VFO, sa))
        A("s_mov_b64 exec, -1")

    def kvpick(j):
        A("s_ff1_i32_b32 s%d, s%d" % (sT0, sT0))
        if j is None:
            A("s_mov_b32 m0, s%d" % sGO)
            A("s_add_u32 s%d, s%d, 32768" % (sGO, sGO))
        else:
            A("s_add_u32 m0, s%d, %d" % (sM4, RING[j % 3]))
        A("s_bitset0_b32 s%d, s%d" % (sPEND, sT0))
        A("s_lshl_b32 s%d, s%d, 15" % (sT0, sT0))
        A("s_add_u32 s%d, s%d, s%d" % (sT0, sT0, sKVB))
        A("s_and_b32 s%d, s%d, 0x3ffff" % (sT0, sT0))
        A("s_or_b32 s%d, s%d, s%d" % (sKS, sT0, sKVH))

    def kvld(p):
        return "buffer_load_dwordx4 v%d, s[12:15], s%d offen offset:%d sc1 lds" % (VL16, sKS, p * 1024)

    def kvdma():
        kvpick(None)
        for p in range(4):
            A(kvld(p))

    def wold(stage, g):
        if g in (0, 4):
            A("s_add_u32 m0, s%d, %d" % (sMWO, g * 1024))
        A("s_add_u32 s%d, s%d, %d" % (sT0, sWOB_, stage * 112 * 896 + g * 7168 - (g & 3) * 1024))
        V.issue(("wo", stage), "buffer_load_dwordx4 v124, %s, s%d offen offset:%d lds" % (sr(SWO, 4), sT0, (g & 3) * 1024))

    def xcc_put():
        A("s_lshl_b32 s%d, s%d, 3" % (sT0, sHB))
        A("v_mov_b32 v%d, v%d" % (VFA, VN))
        A("v_xor_b32 v%d, s%d, v%d" % (VFA + 1, sXC, VN + 1))
        A("s_add_u32 s%d, s%d, s%d" % (sT0, sT0, sXT))
        flag(sT0, VFA, "xput")

    def oprobe():
        A("buffer_load_dword v4, v3, s[12:15], s%d offen offset:2044 sc1" % sOC)

    HOOKS = OPT["hk"].split(".")
    pstate = dict(n=0)

    def hook(nm):
        if nm == OPT["kf"]:
            assert pstate["n"] == 0
            V.need("kv")
            flag(sDONE)
            if OPT["kvs"] == "late":
                for p in range(4):
                    V.issue("kv2", "buffer_store_dwordx4 %s, v%d, s[12:15], s%d offen offset:%d" % (vr(K0 + 4 * p, 4), VL16, sKVB, p * 1024))
            if TS and not OPT["tsb"]:
                A("s_memtime s[96:97]")
                L.drain()
                A("s_mov_b32 s%d, s96" % (STS + 4))
        if nm not in HOOKS:
            return
        idx = pstate["n"]
        pstate["n"] += 1
        if idx == 0:
            A(poll(VFC))
            return
        A("s_cmp_ge_u32 s%d, %d" % (sGO, LE))
        A("s_cbranch_scc1 Lchk_%d" % idx)
        A("v_cmp_eq_u64 %s, %s, %s" % (sr(sFM, 2), vr(VFC, 2), vr(VN, 2)))
        A("s_and_b32 s%d, s%d, s%d" % (sT0, sFM, sPEND))
        A("s_cbranch_scc1 Lgo_%d" % idx)
        A.label("Lgo_%d_ret" % idx)
        if nm != OPT["xp"]:
            A(poll(VFC))
        A.label("Lchk_%d" % idx)
        if nm == OPT["xp"]:
            A(poll(VFC))
        tail.append(("go", idx))

    QP = OPT["qp"].split(".")
    QP += [""] * (8 - len(QP))
    assert sorted("".join(QP)) == list("0123456")
    LO = int(OPT["lo"])
    items = []
    barpos = {}
    for i in range(8):
        barpos[i] = max(len(items) - (LO if i < 7 else 0), 0)
        if i < 7:
            items += [(sec, i, ks, i) for ks in range(4) for sec in ("K", "V")]
        for c in QP[i]:
            c = int(c)
            av = max(min(WQG[c >> 1] + 1, 7), c)
            assert av <= i, (c, i)
            items += [("Q", c, ks, av) for ks in range(4)]
    needbar7 = any(it[3] > 6 for it in items)
    bufs = [80, 84, 88, 92, 240, 244, 248, 252]
    st_ = dict(rd=0, bar=-1)
    bufof = {}
    first = dict(K=True, V=True, Q=True)

    def pump(ex):
        while st_["rd"] < len(items) and bufs and items[st_["rd"]][3] <= st_["bar"] and st_["rd"] - ex < int(OPT["look"]):
            n = st_["rd"]
            kind, c, ks, _ = items[n]
            b = bufs.pop(0)
            bufof[n] = b
            base, off = (WQ, 0) if kind == "Q" else (WA, WSEC if kind == "V" else 0)
            for t in range(2):
                L.issue(("w", n), "ds_read_b64_tr_b16 %s, v%d offset:%d" % (vr(b + 2 * t, 2), base, off + c * 4096 + ks * 1024 + t * 256))
            st_["rd"] += 1

    def item(n):
        kind, c, ks, _ = items[n]
        pump(n)
        L.need(("x", c, ks))
        L.need(("w", n))
        x, b = XF + 16 * c + 4 * ks, bufof[n]
        acc = dict(K=AK, V=AV, Q=AQ)[kind]
        cc = "0" if first[kind] else vr(acc, 16)
        first[kind] = False
        if kind == "V":
            mf(acc, x, b, cc)
        else:
            mf(acc, b, x, cc)
        bufs.append(b)
        pump(n + 1)

    def patch(p):
        A("s_mov_b64 exec, 0x%x" % (0xffff << (16 * p)) if p < 2 else "s_mov_b32 exec_lo, 0")
        if p >= 2:
            A("s_mov_b32 exec_hi, 0x%x" % (0xffff << (16 * (p - 2))))
        L.issue("g", "ds_write_b16 v%d, v%d" % (VGP, VGT))
        A("s_mov_b64 exec, -1")

    vq = []
    for i in range(7):
        for f in vq:
            f()
        V.need(("G", i))
        L.need("g")
        A("s_barrier")
        st_["bar"] = i
        if OPT["tsb"] == "a":
            if i:
                A("s_mov_b32 s%d, s96" % (STS + i))
            if i < 6:
                A("s_memtime s[96:97]")
        elif i == 0:
            stamp(1)
        for ks in range(4):
            L.issue(("x", i, ks), "ds_read_b128 %s, v%d offset:%d" % (vr(XF + 16 * i + 4 * ks, 4), XA + ks, XSLOT[i & 1]))
            if ks == 0:
                pump(barpos[i])
        for p in range(4):
            if WQG[p] == i:
                patch(p)
        vq = wpieces(i + 2)
        xq = xpieces(i + 2)
        if i == 2:
            vq.append(lambda: V.issue("n", "buffer_load_dwordx2 %s, v%d, s[32:35], 0 offen sc1" % (vr(VN, 2), VFO)))
        if vq:
            vq.pop(0)()
        for n in range(barpos[i], barpos[i + 1]):
            item(n)
            if xq and items[n][0] == "V" and items[n][1] == i:
                L.need(("x", i, 3))
                vq += xq
                xq = []
            if vq:
                vq.pop(0)()
        assert not xq
    assert not vq
    stamp(2)
    rest = list(range(barpos[7], len(items)))
    if needbar7:
        pre, rest = [n for n in rest if items[n][3] <= 6], [n for n in rest if items[n][3] > 6]
        assert not pre or pre[-1] < rest[0]
    else:
        pre, rest = rest, []

    def fill(k, nop=0):
        for _ in range(k):
            if pre:
                item(pre.pop(0))
                nop -= 8
        if nop > 0:
            A("s_nop %d" % (nop - 1))
    A("s_lshl_b32 s%d, s%d, %d" % (sDONE, sQB, FSH))
    A("s_add_u32 s%d, s%d, s%d" % (sDONE, sDONE, sFKV))
    fill(2, 10)
    for r in range(8):
        A("v_cvt_pk_bf16_f32 v%d, v%d, v%d" % (K0 + r, AK + 2 * r, AK + 2 * r + 1))
    A("v_cndmask_b32 v%d, v%d, v24, %s" % (K0 + 6, K0 + 6, sr(sLOW, 2)))
    A("v_cndmask_b32 v%d, v%d, 0, %s" % (K0 + 7, K0 + 7, sr(sLOW, 2)))
    for p in range(2):
        V.issue("kv", "buffer_store_dwordx4 %s, v%d, s[12:15], s%d offen offset:%d %s" % (vr(K0 + 4 * p, 4), VL16, sKVB, p * 1024, "" if OPT["kvs"] == "no" else "sc1"))
    fill(1)
    for r in range(8):
        A("v_cvt_pk_bf16_f32 v%d, v%d, v%d" % (V0 + r, AV + 2 * r, AV + 2 * r + 1))
    fill(1)
    for r in range(8):
        A("v_cndmask_b32 v%d, v%d, v25, %s" % (V0 + r, V0 + r, sr(sL24, 2)))
    for p in range(2, 4):
        V.issue("kv", "buffer_store_dwordx4 %s, v%d, s[12:15], s%d offen offset:%d %s" % (vr(K0 + 4 * p, 4), VL16, sKVB, p * 1024, "" if OPT["kvs"] == "no" else "sc1"))
    if OPT["kvs"] == "both":
        for p in range(4):
            V.issue("kv2", "buffer_store_dwordx4 %s, v%d, s[12:15], s%d offen offset:%d" % (vr(K0 + 4 * p, 4), VL16, sKVB, p * 1024))
    V.need("n")
    A("v_cmp_eq_u64 vcc, 0, %s" % vr(VN, 2))
    if needbar7:
        V.need(("G", 7))
        for p in range(4):
            if WQG[p] == 7:
                patch(p)
    for p in range(4):
        L.issue("kv", "ds_write_b128 v26, %s offset:%d" % (vr(K0 + 4 * p, 4), LA + p * 1024))
        fill(1)
    A("s_cbranch_vccnz Lnonce_wait")
    A.label("Lnonce_ok")
    tail.append(("nonce",))
    fill(99)
    if needbar7:
        L.need("g")
        A("s_barrier")
        st_["bar"] = 8
        for k, n in enumerate(rest):
            item(n)
            hook("q%d" % k)
    stamp(3)
    hook("e0")
    A("s_nop 11")
    A("v_mul_f32 v%d, %s, v%d" % (VG, f32(-LOG2E), AQ + 12))
    for r in range(8):
        A("v_pk_mul_f32 %s, %s, %s" % (vr(AQ + 2 * r, 2), vr(AQ + 2 * r, 2), sr(sQS, 2)))
    A("v_exp_f32 v%d, v%d" % (VG, VG))
    for r in range(8):
        A("v_cvt_pk_bf16_f32 v%d, v%d, v%d" % (QA + r, AQ + 2 * r, AQ + 2 * r + 1))
    A("v_cndmask_b32 v%d, v%d, 0, %s" % (QA + 6, QA + 6, sr(sLOW, 2)))
    A("v_add_f32 v%d, 1.0, v%d" % (VG, VG))
    mf(S[1], K0, QA, "0")
    mf(S[1], K1, QA + 4, vr(S[1], 16))
    L.issue("qx", "ds_write_b128 v28, %s" % vr(QA, 4))
    A("v_rcp_f32 v%d, v%d" % (VG, VG))
    A("v_mov_b32 v24, s%d" % sGB)
    A("v_and_b32 v122, 31, v%d" % VLN)
    A("v_fma_f32 v%d, s%d, v%d, v24" % (VG, sGA, VG))
    A("v_lshlrev_b32 v122, 3, v122")
    hook("e1")
    A("s_nop 6")
    s = S[1]
    A("v_max3_f32 v%d, v%d, v%d, v%d" % (E, s, s + 1, s + 2))
    A("v_max3_f32 v%d, v%d, v%d, v%d" % (E + 1, s + 3, s + 4, s + 5))
    A("v_max3_f32 v%d, v%d, v%d, v%d" % (E + 2, s + 6, s + 7, s + 8))
    A("v_max3_f32 v%d, v%d, v%d, v%d" % (E + 3, s + 9, s + 10, s + 11))
    A("v_max3_f32 v%d, v%d, v%d, v%d" % (E, E, s + 12, s + 13))
    A("v_max3_f32 v%d, v%d, v%d, v%d" % (E + 1, E + 1, s + 14, s + 15))
    A("v_max3_f32 v%d, v%d, v%d, v%d" % (E, E, E + 2, E + 3))
    A("v_max_f32 v%d, v%d, v%d" % (E, E, E + 1))
    A("v_mov_b32 v%d, v%d" % (E + 1, E))
    A("s_nop 1")
    A("v_permlane32_swap_b32 v%d, v%d" % (E, E + 1))
    A("s_nop 1")
    A("v_max_f32 v%d, v%d, v%d" % (E, E, E + 1))
    A("v_cvt_pk_bf16_f32 v%d, -v%d, 0" % (E, E))
    A("v_cndmask_b32 v%d, v%d, v%d, %s" % (QA + 6, QA + 6, E, sr(sLOW, 2)))
    L.issue("qx", "ds_write_b128 v28, %s offset:1024" % vr(QA + 4, 4))
    hook("p3")
    L.drain()
    A("s_barrier")
    stamp(5)
    if OPT["tsb"] == "s":
        stamp(1, True)

    def rd(tag, dst, i, part):
        sl = RING[(i >> 2) % 3]
        base, off = (VKD, 0) if sl == LD else (VKA, sl)
        L.issue(tag, "ds_read_b128 %s, v%d offset:%d" % (vr(dst, 4), base, off + (i & 3) * 4096 + part * 1024))

    A("s_setprio 2")
    rd("K0", K0, 0, 0)
    rd("K1", K1, 0, 1)
    L.issue("QB", "ds_read_b128 %s, v27" % vr(QB, 4))
    L.issue("QB", "ds_read_b128 %s, v27 offset:1024" % vr(QB + 4, 4))
    hook("p3b")
    for r in range(4):
        A("v_mov_b32 v%d, -1" % (252 + r))
    A("v_add_u32 v%d, s%d, v%d" % (VXW, sM4, VL16))
    A("v_xor_b32 v%d, 0x4000, v%d" % (VXW + 1, VXW))
    Q = [QA, QB]
    assert needbar7
    vm = {}
    XW = {2: [("wo", 0)], 3: ["pois", "xput"], 5: [("wo", 1), "xget"]}

    def barcnt(j):
        tags = [t for t in XW.get(j, []) + [("kv", j + 1)] if t in V.q]
        L.q = []
        if not tags:
            return "s_waitcnt lgkmcnt(0)"
        idx = max(len(V.q) - 1 - V.q[::-1].index(t) for t in tags)
        n = len(V.q) - 1 - idx
        V.q = V.q[idx + 1:]
        return "s_waitcnt vmcnt(%d) lgkmcnt(0)" % n
    for j in range(7):
        ops = []
        if j <= 4:
            ops += [(lambda p=p, j=j: V.issue(("kv", j + 3), kvld(p))) for p in range(4)]
        if j <= 1:
            ops.append(lambda: V.issue("poll", poll(VFC)))
        if j == 0:
            ops += [(lambda g=g: wold(0, g)) for g in range(7)]
        if j == 1:
            ops += [(lambda e=e: V.issue("pois", "buffer_store_dwordx4 v[252:255], v%d, s[12:15], s%d offen offset:%d sc1" % (VL16, sOP, e * 1024))) for e in range(2)]
            if OPT["ost"] == "dyn":
                ops.append(xcc_put)
        if j == 3:
            ops += [lambda: flag(sFOP)] + [(lambda g=g: wold(1, g)) for g in range(7)]
            if OPT["ost"] == "dyn":
                ops.append(lambda: V.issue("xget", "buffer_load_dwordx2 %s, v122, s[12:15], s%d offen sc1" % (vr(VFA, 2), sXT)))
        if j == 6:
            ops.append(lambda: V.issue("opoll", poll(VFC, sFOC, 122)))
        sl = 2 * (8 * j + 7)
        for k, o in enumerate(ops):
            vm.setdefault(sl, []).append(o)
            sl += 1
        assert sl <= 2 * (8 * j + 14)
    vm.setdefault(2 * int(OPT["opr"]), []).append(oprobe)
    sc = S[0]
    qof = lambda u: (u & 1) ^ (1 if u >= 62 else 0)

    def states(n0):
        n, skip = 0, None
        for l in A.lines[n0:]:
            t = l.split(";")[0].strip()
            if skip:
                if t == skip + ":":
                    skip = None
                continue
            if not t or t.endswith(":"):
                continue
            n += int(t.split()[1]) + 1 if t.startswith("s_nop") else 1
            if t.startswith("s_cbranch") and t.split()[1].startswith(("Lchk", "Lbar")):
                skip = t.split()[1]
        return n
    late = {}
    for u in range(65):
        j, st, i, a = u >> 3, u & 7, u >> 1, u & 1
        barb = (st == 6 and j < 7) or u == 63
        if u in late:
            A("s_cbranch_scc0 Lbarl_%d" % u)
            if late[u]:
                A(late[u])
            A("s_barrier")
            A.label("Lbarl_%d" % u)
        if u:
            A("s_setprio 2")
        if u == 7:
            stamp(7)
        elif OPT["tsb"] is True and st == 7 and j < 7:
            stamp(j, True)
        if u == 64:
            for q in range(4):
                L.issue(("or", q), "ds_read_b128 %s, v%d offset:%d" % (vr(S[1] + 4 * q, 4), VXW + 1, LA + q * 1024))
        pos = {}

        def sm(h):
            L.need("K%d" % h)
            if u == 1:
                L.need("QB")
            mf(sc, K0 + 4 * h, Q[qof(u)] + 4 * h, vr(sc, 16) if h else "0")
            pos["s%d" % h] = len(A.lines)
            if a == 1 and i + 1 < 32:
                rd("K%d" % h, K0 + 4 * h, i + 1, h)

        def pv(h):
            if u:
                o = O[qof(u - 1)]
                L.need("V%d" % h)
                mf(o, V0 + 4 * h, P + 4 * h, "0" if u <= 2 and h == 0 else vr(o, 16))
                pos["p%d" % h] = len(A.lines)
            if a == 0 and u < 64:
                rd("V%d" % h, V0 + 4 * h, i, 2 + h)

        def wo(g):
            for stage in range(2):
                q = u - (23 + 24 * stage)
                if 0 <= q < 7 and OPT["wo"]:
                    for n in range(5 * q + (0, 2, 4)[g], min(5 * q + (2, 4, 5)[g], 32)):
                        hl, s_, nt, t = n >> 3, (n >> 2) & 1, (n >> 1) & 1, n & 1
                        g0 = 7 * hl + (5 if (s_, t) == (1, 1) else 4 * s_ + 2 * t)
                        reg = 128 + 64 * stage + 2 * n
                        L.issue("wo", "ds_read_b64_tr_b16 %s, v%d offset:%d" % (
                            vr(reg, 2), VTO if g0 & 1 else VTE, (g0 >> 1) * 1024 + nt * 512 + (256 if g0 & 1 else 0)))

        def gap(g):
            if g == 0:
                if 1 <= u <= 6:
                    hook("s%d" % (u - 1))
                if st == 7 and j <= 4:
                    if j <= 2:
                        A("v_cmp_eq_u64 %s, %s, %s" % (sr(sFM, 2), vr(VFC, 2), vr(VN, 2)))
                    A("s_and_b32 s%d, s%d, s%d" % (sT0, sFM, sPEND))
                    A("s_cbranch_scc0 Lslow_%d" % j)
                    A.label("Lslow_%d_ret" % j)
                    tail.append(("slow", j))
                    kvpick(j + 3)
                if u == 47:
                    if OPT["ost"] == "dyn":
                        A("v_xor_b32 v%d, s%d, v%d" % (VFA + 1, sXC, VFA + 1))
                    A("v_lshrrev_b32 v122, 8, v3")
                    if OPT["ost"] == "dyn":
                        A("v_cmp_ne_u64 %s, %s, %s" % (sr(sXF, 2), vr(VFA, 2), vr(VN, 2)))
                if u == 62:
                    V.need("opoll")
                    A("v_cmp_ne_u64 vcc, %s, %s" % (vr(VFC, 2), vr(VN, 2)))
                    A("s_cbranch_vccnz Lpois")
                    A.label("Lpois_ret")
                    tail.append(("pois",))
            if g in (1, 2):
                for o in vm.get(2 * u + g - 1, []):
                    o()
            if g < 3:
                wo(g)

        def pad(frm, at, need=12, cap=16):
            k = min(need - states(pos[frm]), cap)
            if k > 0:
                A.lines.insert(at, "    s_nop %d" % (k - 1))
                for key in pos:
                    if pos[key] > at:
                        pos[key] += 1

        if u == 64:
            pv(0)
            gap(1)
            pv(1)
            break
        if u == 63:
            pv(0); gap(0); pv(1); gap(1)
            pad("p1", len(A.lines), 6)
            sm(0); gap(2)
            pad("p1", len(A.lines))
            for q in range(4):
                L.issue("ox", "ds_write_b128 v%d, %s offset:%d" % (VXW, vr(O[1] + 4 * q, 4), LA + q * 1024))
                if q == 0:
                    sm(1)
        elif barb:
            pv(0); gap(0); pv(1); gap(1); sm(0); gap(2); sm(1)
        else:
            sm(0); gap(0); sm(1); gap(1)
            pos["g1"] = len(A.lines)
            pv(0); gap(2)
            pos["g2"] = len(A.lines)
            pv(1)
        A("s_setprio 0")
        if barb:
            at = len(A.lines)
            if u == 6:
                A("s_cmp_ge_u32 s%d, %d" % (sGO, LE))
                A("s_cbranch_scc0 Lspin0")
                A.label("Lspin0_ret")
                tail.append(("spin0",))
                V.q = [("kv", 1)] * 4 + [("kv", 2)] * 4
            w = barcnt(j)
            A("s_cmp_lt_u32 s%d, 4" % sW)
            inside = u in (6, 63)
            if not inside:
                A(w)
            A("s_cbranch_scc1 Lbar_%d" % u)
            if inside:
                A(w)
            A("s_barrier")
            A.label("Lbar_%d" % u)
            late[u + 1] = w if inside else None
            pad("s1", at)
        else:
            free1 = max(6 - (pos["g1"] - pos["s1"]), 0)
            pad("s1", pos["g1"], 12, free1)
            pad("s1", pos["g2"])
        for k in range(16):
            A("v_exp_f32 v%d, v%d" % (sc + k, sc + k))
            if k == 0:
                A("s_setprio 1")
            if k & 3 == 1 and k > 4:
                for r in (k // 2 - 2, k // 2 - 1):
                    A("v_cvt_pk_bf16_f32 v%d, v%d, v%d" % (P + r, sc + 2 * r, sc + 2 * r + 1))
        for r in (6, 7):
            A("v_cvt_pk_bf16_f32 v%d, v%d, v%d" % (P + r, sc + 2 * r, sc + 2 * r + 1))
    stamp(8)
    n64 = pos["p1"]
    A("v_mov_b32 v%d, 0" % E)
    A("v_mov_b32 v%d, 0" % (E + 1))
    A("v_mov_b32 v%d, %s" % (E + 2, f32(2.0 ** 100)))
    A("v_mov_b32 v%d, %s" % (E + 3, f32(2.0 ** -60)))
    Oa = O[0]
    L.drain()
    if 12 > states(n64):
        A("s_nop %d" % (12 - states(n64) - 1))
    for r in range(0, 16, 2):
        A("v_pk_add_f32 %s, %s, %s" % (vr(Oa + r, 2), vr(Oa + r, 2), vr(S[1] + r, 2)))
    for r in range(0, 16, 2):
        A("v_pk_fma_f32 %s, %s, 0, %s" % (vr(E, 2), vr(Oa + r, 2), vr(E, 2)))
    A("v_cmp_nle_f32 vcc, v%d, v%d" % (Oa + 12, E + 2))
    A("v_cmp_nge_f32 %s, v%d, v%d" % (sr(sT0, 2), Oa + 12, E + 3))
    A("v_cmp_u_f32 %s, v%d, v%d" % (sr(sT2, 2), E, E + 1))
    A("s_or_b64 vcc, vcc, %s" % sr(sT0, 2))
    A("s_and_b64 vcc, vcc, %s" % sr(sLOW, 2))
    A("s_or_b64 vcc, vcc, %s" % sr(sT2, 2))
    A("s_cbranch_scc1 Lfallback")
    A.label("Lepi")
    A("v_rcp_f32 v%d, v%d" % (E, Oa + 12))
    A("s_add_u32 s%d, s%d, 4096" % (sT1, sOC))
    A("v_mul_f32 v%d, v%d, v%d" % (E, E, VG))
    A("s_add_u32 s%d, s%d, 8192" % (sT2, sOC))
    A("v_mov_b32 v%d, v%d" % (E + 1, E))
    A("s_add_u32 s%d, s%d, 12288" % (sT3, sOC))
    A("s_mov_b32 s%d, 0xff" % sPEND)
    A("v_permlane32_swap_b32 v%d, v%d" % (E, E + 1))
    def ostore(sc):
        for r in range(4):
            A("v_cvt_pk_bf16_f32 v%d, v%d, v%d" % (P + r, Oa + 2 * r, Oa + 2 * r + 1))
        A("buffer_store_dwordx4 %s, v%d, s[12:15], s%d offen %s" % (vr(P, 4), VL16, sOP, sc))
        for r in range(4, 8):
            A("v_cvt_pk_bf16_f32 v%d, v%d, v%d" % (P + r, Oa + 2 * r, Oa + 2 * r + 1))
        A("v_cndmask_b32 v%d, v%d, 0, %s" % (P + 6, P + 6, sr(sLOW, 2)))
        A("v_cndmask_b32 v%d, v%d, 0, %s" % (P + 7, P + 7, sr(sLOW, 2)))
        A("s_cmp_eq_u32 s%d, 7" % sNB)
        A("buffer_store_dwordx4 %s, v%d, s[12:15], s%d offen offset:1024 %s" % (vr(P + 4, 4), VL16, sOP, sc))
    A("s_cmp_lg_u64 %s, 0" % sr(sXF, 2))
    for r in range(0, 16, 2):
        A("v_pk_mul_f32 %s, %s, %s op_sel_hi:[1,0]" % (vr(Oa + r, 2), vr(Oa + r, 2), vr(E, 2)))
    if OPT["ost"] == "dyn":
        A("s_cbranch_scc1 Ldual_o")
        tail.append(("dual", "o", ostore))
        ostore("")
        A.label("Ldual_o_ret")
    else:
        ostore(OST)
    A("s_cbranch_scc1 %s" % ("Lflag_only" if TS else Lend))
    stamp(9)
    A("s_waitcnt vmcnt(2)")
    A("v_cmp_ne_u32 %s, -1, v4" % sr(sFM, 2))
    if OPT["osync"]:
        A("s_barrier")
    osrc = [sOC, sT1, sT2, sT3]

    def oissue(tag):
        A("s_and_b32 s%d, s%d, s%d" % (sL, sFM, sPEND))
        for hl in range(8):
            A("s_bitcmp0_b32 s%d, %d" % (sL, hl))
            A("s_cbranch_scc1 Loi%s_%d" % (tag, hl))
            for e in range(2):
                A("buffer_load_dwordx4 %s, v%d, s[12:15], s%d offen offset:%d sc1" % (
                    vr(64 + 8 * hl + 4 * e, 4), VL16, osrc[hl >> 1], (hl & 1) * 2048 + e * 1024))
            A.label("Loi%s_%d" % (tag, hl))
        oprobe()

    oissue("a")
    if TS and not OPT["tsb"] and OPT.get("ocnt"):
        A("s_bcnt1_i32_b32 s%d, s%d" % (STS + 6, sL))
    A("s_mov_b64 %s, -1" % sr(sOK, 2))
    A("s_mov_b32 s%d, 0x4000" % sSPIN)
    for r in range(0, 32, 2):
        A("v_mov_b64 %s, 0" % vr(32 + r, 2))
    A("v_and_b32 v11, 31, v%d" % VLN)
    A("v_lshrrev_b32 v19, 5, v%d" % VLN)
    A("v_and_b32 v10, 7, v%d" % VLN)
    A("v_xor_b32 v19, v19, v10")
    A("v_lshlrev_b32 v19, 4, v19")
    A("v_lshl_add_u32 v11, v11, 8, v19")
    A("s_lshl_b32 s%d, s%d, 13" % (sT0, sW))
    A("s_add_u32 s%d, s%d, %d" % (sT0, sT0, LD))
    A("v_add_u32 v12, s%d, v11" % sT0)
    for q in range(1, 4):
        A("v_xor_b32 v%d, %d, v12" % (12 + q, q * 32))
    A("v_lshrrev_b32 v11, 3, v%d" % VLN)
    A("v_lshlrev_b32 v19, 1, v10")
    A("v_xor_b32 v19, v19, v11")
    A("v_lshlrev_b32 v19, 4, v19")
    A("v_lshl_add_u32 v19, v11, 8, v19")
    A("s_and_b32 s%d, s%d, 3" % (sT0, sW))
    A("s_lshl_b32 s%d, s%d, 11" % (sT0, sT0))
    A("s_lshr_b32 s%d, s%d, 2" % (sKVB, sW))
    A("s_lshl_b32 s%d, s%d, 15" % (sKVB, sKVB))
    A("s_add_u32 s%d, s%d, s%d" % (sT0, sT0, sKVB))
    A("s_add_u32 s%d, s%d, %d" % (sT0, sT0, LD))
    A("v_add_u32 v16, s%d, v19" % sT0)
    A("v_xor_b32 v17, 16, v16")
    A("v_mul_u32_u24 v11, 896, v11")
    A("v_lshl_add_u32 v18, v10, 4, v11")
    A("s_lshl_b32 s%d, s%d, 3" % (sT0, sTB))
    A("s_add_u32 s%d, s%d, s%d" % (sT0, sT0, sW))
    A("s_mul_i32 s%d, s%d, %d" % (sT0, sT0, 8 * 896))
    A("s_lshl_b32 s%d, s%d, 7" % (sKVB, sNB))
    A("s_add_u32 s%d, s%d, s%d" % (sKS, sT0, sKVB))
    A.label("Leval")
    for hl in range(8):
        A("s_bitcmp0_b32 s%d, %d" % (sL, hl))
        A("s_cbranch_scc1 Lev_%d" % hl)
        thr = [t for t in (6, 4, 2, 1, 0) if t <= 7 - hl]
        if len(thr) > 1:
            A("s_lshr_b32 s%d, s%d, %d" % (sT0, sL, hl + 1))
            A("s_bcnt1_i32_b32 s%d, s%d" % (sT0, sT0))
        for t in thr:
            A("s_waitcnt vmcnt(%d)" % (2 * t + 1))
            if t:
                A("s_cmp_ge_u32 s%d, %d" % (sT0, t))
                A("s_cbranch_scc1 Lew_%d" % hl)
        A.label("Lew_%d" % hl)
        o = 64 + 8 * hl
        A("v_max3_u32 v8, v%d, v%d, v%d" % (o, o + 1, o + 2))
        A("v_max3_u32 v9, v%d, v%d, v%d" % (o + 3, o + 4, o + 5))
        A("v_max3_u32 v8, v8, v%d, v%d" % (o + 6, o + 7))
        A("v_max_u32 v8, v8, v9")
        A("v_cmp_eq_u32 vcc, -1, v8")
        A("s_and_b64 vcc, vcc, %s" % sr(sOK, 2))
        A("s_cbranch_scc1 Lev_%d" % hl)
        for e in range(2):
            for nt in range(2):
                mf(32 + 16 * nt, 128 + ((hl * 2 + e) * 2 + nt) * 4, 64 + 8 * hl + 4 * e, vr(32 + 16 * nt, 16))
        A("s_bitset0_b32 s%d, %d" % (sPEND, hl))
        A.label("Lev_%d" % hl)
    A("s_cmp_lg_u32 s%d, 0" % sPEND)
    A("s_cbranch_scc1 Loround")
    tail.append(("oround", oissue))
    if TS:
        A("s_sub_u32 s%d, 0x4000, s%d" % (STS + 10, sSPIN))
        A("s_add_u32 s%d, s%d, s%d" % (STS + 10, STS + 10, STS))
    stamp(11)
    A("s_nop 10")
    for nt in range(2):
        for q in range(4):
            L.issue("r", "ds_write_b128 v%d, %s offset:%d" % (12 + q, vr(32 + 16 * nt + 4 * q, 4), nt * 128))
    L.drain()
    A("s_barrier")
    for src in range(4):
        for e in range(2):
            L.issue(("s", src), "ds_read_b128 %s, v%d offset:%d" % (vr(64 + 8 * src + 4 * e, 4), 16 + e, src * 8192))
    for src in range(1, 4):
        L.need(("s", src))
        for r in range(0, 8, 2):
            A("v_pk_add_f32 %s, %s, %s" % (vr(64 + r, 2), vr(64 + r, 2), vr(64 + 8 * src + r, 2)))
    for r in range(4):
        A("v_cvt_pk_bf16_f32 v%d, v%d, v%d" % (24 + r, 64 + 2 * r, 65 + 2 * r))
    A("buffer_store_dwordx4 v[24:27], v18, s[28:31], s%d offen %s" % (sKS, OPT["osc"]))

    def ts_out():
        if not TS:
            return
        A("s_waitcnt vmcnt(0)")
        A("s_memtime s[96:97]")
        A("s_memrealtime s[100:101]")
        A("s_waitcnt lgkmcnt(0)")
        A("s_mov_b32 s%d, s96" % (STS + 12))
        A("s_mov_b32 s%d, s98" % (STS + 13))
        A("s_mov_b32 s%d, s100" % (STS + 14))
        A("s_getreg_b32 s%d, hwreg(HW_REG_XCC_ID)" % (STS + 15))
        if TS == "dbg":
            Ld = A.newlabel("dbg")
            A("s_not_b32 s98, s98")
            A("v_mov_b32 v32, s98")
            A("v_mov_b32 v33, s100")
            A("s_mov_b64 exec, 1")
            A("buffer_atomic_umax v32, v%d, s[32:35], 0 offen offset:8" % VFO)
            A("buffer_atomic_umax v33, v%d, s[32:35], 0 offen offset:12" % VFO)
            for r in range(1, 13):
                if r != 6:
                    A("s_sub_u32 s%d, s%d, s%d" % (STS + r, STS + r, STS))
                A("v_mov_b32 v%d, s%d" % (33 + r, STS + r))
            A("s_cmp_eq_u32 s%d, 7" % sNB)
            A("s_cbranch_scc1 %s" % Ld)
            for r in range(1, 13):
                A("buffer_atomic_umax v%d, v%d, s[32:35], 0 offen offset:%d" % (33 + r, VFO, 12 + 4 * r))
            A.label(Ld)
            return
        for r in range(16):
            A("v_mov_b32 v%d, s%d" % (32 + r, STS + r))
        A("s_lshl_b32 s64, s2, 3")
        A("s_add_u32 s64, s64, s%d" % sW)
        A("s_lshl_b32 s64, s64, 6")
        A("s_add_u32 s64, s64, %d" % WS_TS)
        A("s_mov_b64 exec, 1")
        for q in range(4):
            A("buffer_store_dwordx4 %s, v%d, s[12:15], s64 offen offset:%d" % (vr(32 + 4 * q, 4), VFO, q * 16))
    ts_out()
    A.label(Lend)
    A("s_endpgm")

    if TS:
        A.label("Lflag_only")
        stamp(9)
        ts_out()
        A("s_endpgm")

    for t in tail:
        if t[0] == "nonce":
            A.label("Lnonce_wait")
            A("s_mov_b32 s%d, 0x4000" % sSPIN)
            A.label("Lnonce_l")
            A("buffer_load_dwordx2 %s, v%d, s[32:35], 0 offen sc1" % (vr(VN, 2), VFO))
            A("s_waitcnt vmcnt(0)")
            A("v_cmp_eq_u64 vcc, 0, %s" % vr(VN, 2))
            A("s_cbranch_vccz Lnonce_ok")
            A("s_sub_u32 s%d, s%d, 1" % (sSPIN, sSPIN))
            A("s_cbranch_scc0 Lnonce_l")
            A("s_branch Lnonce_ok")
        elif t[0] == "go":
            A.label("Lgo_%d" % t[1])
            kvdma()
            if TS and not OPT["tsb"]:
                A("s_mov_b32 s%d, %d" % (STS + 6, t[1]))
            A("s_cmp_ge_u32 s%d, %d" % (sGO, LE))
            A("s_cbranch_scc1 Lchk_%d" % t[1])
            A("s_and_b32 s%d, s%d, s%d" % (sT0, sFM, sPEND))
            A("s_cbranch_scc1 Lgo_%d" % t[1])
            A("s_branch Lgo_%d_ret" % t[1])
        elif t[0] == "spin0":
            A.label("Lspin0")
            A("s_mov_b32 s%d, 0x4000" % sSPIN)
            A.label("Lspin0_l")
            A("s_waitcnt vmcnt(0)")
            A("v_cmp_eq_u64 %s, %s, %s" % (sr(sFM, 2), vr(VFC, 2), vr(VN, 2)))
            A("s_and_b32 s%d, s%d, s%d" % (sT0, sFM, sPEND))
            A("s_cbranch_scc1 Lspin0_go")
            A(poll(VFC))
            A("s_sub_u32 s%d, s%d, 1" % (sSPIN, sSPIN))
            A("s_cbranch_scc0 Lspin0_l")
            A("s_mov_b32 s%d, s%d" % (sT0, sPEND))
            A.label("Lspin0_go")
            kvdma()
            if TS and not OPT["tsb"]:
                A("s_mov_b32 s%d, 15" % (STS + 6))
            A("s_cmp_ge_u32 s%d, %d" % (sGO, LE))
            A("s_cbranch_scc1 Lspin0_ret")
            A("s_and_b32 s%d, s%d, s%d" % (sT0, sFM, sPEND))
            A("s_cbranch_scc1 Lspin0_go")
            A("s_branch Lspin0")
        elif t[0] == "slow":
            j = t[1]
            A.label("Lslow_%d" % j)
            A("s_mov_b32 s%d, 0x4000" % sSPIN)
            A.label("Lslow_%d_l" % j)
            A(poll(VFC))
            A("s_waitcnt vmcnt(0)")
            A("v_cmp_eq_u64 %s, %s, %s" % (sr(sFM, 2), vr(VFC, 2), vr(VN, 2)))
            A("s_and_b32 s%d, s%d, s%d" % (sT0, sFM, sPEND))
            A("s_cbranch_scc1 Lslow_%d_ret" % j)
            A("s_sub_u32 s%d, s%d, 1" % (sSPIN, sSPIN))
            A("s_cbranch_scc0 Lslow_%d_l" % j)
            A("s_mov_b32 s%d, s%d" % (sT0, sPEND))
            A("s_branch Lslow_%d_ret" % j)
        elif t[0] == "pois":
            A.label("Lpois")
            A("s_mov_b32 s%d, 0x4000" % sSPIN)
            A.label("Lpois_l")
            A(poll(VFC, sFOC, 122))
            A("s_waitcnt vmcnt(0)")
            A("v_cmp_ne_u64 vcc, %s, %s" % (vr(VFC, 2), vr(VN, 2)))
            A("s_cbranch_vccz Lpois_ret")
            A("s_sub_u32 s%d, s%d, 1" % (sSPIN, sSPIN))
            A("s_cbranch_scc0 Lpois_l")
            A("s_branch Lpois_ret")
        elif t[0] == "dual":
            A.label("Ldual_%s" % t[1])
            t[2]("sc1")
            A("s_branch Ldual_%s_ret" % t[1])
        elif t[0] == "oround":
            A.label("Loround")
            A("s_waitcnt vmcnt(0)")
            A("v_cmp_ne_u32 %s, -1, v4" % sr(sFM, 2))
            A("s_sub_u32 s%d, s%d, 1" % (sSPIN, sSPIN))
            A("s_cbranch_scc0 Loin")
            A("s_mov_b64 %s, 0" % sr(sOK, 2))
            A("s_mov_b32 s%d, 0xff" % sFM)
            A.label("Loin")
            t[1]("b")
            A("s_branch Leval")

    NM = S[1]
    A.label("Lfallback")
    A("v_cndmask_b32 v%d, v%d, 0, %s" % (QA + 6, QA + 6, sr(sLOW, 2)))
    A("v_mov_b32 v%d, 0xff800000" % E)
    A("s_lshl_b32 s%d, s%d, 18" % (sT0, sHB))
    A("s_mov_b32 s%d, 64" % sT1)
    A.label("Lfb1")
    A("buffer_load_dwordx4 %s, v%d, s[12:15], s%d offen sc1" % (vr(K0, 4), VL16, sT0))
    A("buffer_load_dwordx4 %s, v%d, s[12:15], s%d offen offset:1024 sc1" % (vr(K1, 4), VL16, sT0))
    A("s_waitcnt vmcnt(0)")
    mf(S[0], K0, QA, "0")
    mf(S[0], K1, QA + 4, vr(S[0], 16))
    A("s_nop 11")
    for r in range(0, 16, 2):
        A("v_max3_f32 v%d, v%d, v%d, v%d" % (E, E, S[0] + r, S[0] + r + 1))
    A("s_add_u32 s%d, s%d, 4096" % (sT0, sT0))
    A("s_sub_u32 s%d, s%d, 1" % (sT1, sT1))
    A("s_cmp_lg_u32 s%d, 0" % sT1)
    A("s_cbranch_scc1 Lfb1")
    A("v_mov_b32 v%d, v%d" % (E + 1, E))
    A("s_nop 1")
    A("v_permlane32_swap_b32 v%d, v%d" % (E, E + 1))
    A("s_nop 1")
    A("v_max_f32 v%d, v%d, v%d" % (E, E, E + 1))
    for r in range(16):
        A("v_sub_f32 v%d, 0, v%d" % (NM + r, E))
        A("v_mov_b32 v%d, 0" % (Oa + r))
    A("s_lshl_b32 s%d, s%d, 18" % (sT0, sHB))
    A("s_mov_b32 s%d, 64" % sT1)
    A.label("Lfb2")
    for k, reg in enumerate((K0, K1, V0, V1)):
        A("buffer_load_dwordx4 %s, v%d, s[12:15], s%d offen offset:%d sc1" % (vr(reg, 4), VL16, sT0, k * 1024))
    A("s_waitcnt vmcnt(0)")
    mf(S[0], K0, QA, vr(NM, 16))
    mf(S[0], K1, QA + 4, vr(S[0], 16))
    A("s_nop 11")
    for r in range(16):
        A("v_exp_f32 v%d, v%d" % (S[0] + r, S[0] + r))
    A("s_nop 0")
    for r in range(8):
        A("v_cvt_pk_bf16_f32 v%d, v%d, v%d" % (P + r, S[0] + 2 * r, S[0] + 2 * r + 1))
    A("s_nop 1")
    mf(Oa, V0, P, vr(Oa, 16))
    mf(Oa, V1, P + 4, vr(Oa, 16))
    A("s_add_u32 s%d, s%d, 4096" % (sT0, sT0))
    A("s_sub_u32 s%d, s%d, 1" % (sT1, sT1))
    A("s_cmp_lg_u32 s%d, 0" % sT1)
    A("s_cbranch_scc1 Lfb2")
    A("s_nop 11")
    A("s_branch Lepi")
    A("s_endpgm")
    A.label("Lcode_end")
    return name, descriptor(name, 256, 256, 102), "grid=(256,1,1) block=(512,1,1) lds=163840"


def main(out):
    A = Asm()
    n, d, l = gen(A)
    head = ["; gated dual-branch MHA block, single fused launch: QKV projection -> attention -> output projection",
            "; @launch kernel=%s %s" % (n, l),
            '.amdgcn_target "amdgcn-amd-amdhsa--gfx950"', ".text"]
    open(out, "w").write("\n".join(head) + "\n" + A.text() + '.section .rodata,"a"\n' + d + "\n")


if __name__ == "__main__":
    for a in sys.argv[2:]:
        k, _, v = a.partition("=")
        OPT[k] = {"": True, "0": False, "1": True}.get(v, v)
    main(sys.argv[1])
```

```python
import sys, math
sys.path.insert(0, "gen")
from gen import Asm, vr, sr, f32, kernel_begin, descriptor

NAME = "gated_mix__softmax_full_mha__mha_block__prompt"
LOG2E = math.log2(math.e)
QSCALE = (28.0 ** -0.5) * LOG2E

WS_KV = 0
WS_O = 8 << 20
WS_FKV = 13 << 20
WS_FO = (12 << 20) + 65536
WS_XT = (12 << 20) + 131072
WS_USED = 16 << 20
WS_TS = 64 << 20

LA, LC, LD, LE, LB = 0, 32768, 65536, 98304, 131072
LWK = 65536
WSEC = 28672
XSLOT = [LA, LC]
RING = [LA, LC, LD]

SX, SW, SWS, SG, SWO, SOUT, SDBG = 4, 8, 12, 16, 20, 28, 32
sW, sHB, sQB, sC, sXB, sWB, sM4, sMW = 56, 57, 58, 59, 60, 61, 62, 63
sT0, sT1, sT2, sT3 = 64, 65, 66, 67
sKVB, sDONE = 68, 69
sLOW, sL24, sFM = 70, 72, 74
sQS = 76
sSPIN, sWOB_, sNB, sTB = 78, 79, 3, 36
sMWO, sFKV, sCQ, sGA, sGB = 37, 38, 39, 40, 41
sPEND, sOP, sFOP, sFOC, sOC, sKVH = 42, 43, 44, 45, 46, 47
sKS, sL, sOK = 48, 49, 50
sGO = 52
sXC, sXT, sXF = 24, 25, 26
STS = 80

VL16, VLN = 1, 2
VN, VFA, VFC, VFO, VG, VXW = 126, 240, 4, 6, 7, 116
VTE, VTO = 0, 125
QA, QB, P = 8, 16, 24
S = [32, 48]
O = [64, 80]
K0, K1, V0, V1, E = 96, 100, 104, 108, 112
VKA, VKD = 120, 121
VGT = 122
VIX, VKP, VKL = 31, 22, 23
XF = 128
VXD, VWD, XA, VWD2, VGP, WA, WQ = 8, 12, 16, 20, 21, 13, 14

OPT = dict(zv=True, zq=True, sm=True, vg="12", wg="00112", w0="23.47", vdb="", kpk="70", zo="e", wj="03", wb="25", wst="", wpol=".", xpol=".", cmix=True, ts=False, rot="q2h", osc="", sp="1", osync=True, tsb=False, wo=True, ost="sc1", wq="7777", qp=".......0123456", lo="2", look="5", kf="q12", kp="e0", fsh="7", g1="late", tlb="", pf="late", hk="e1.p3b.s1.s2.s3.s4.s5", xp="s4", map="4x8", kvs="sc1", opr="63")


class VQ:
    def __init__(self, A):
        self.A = A
        self.q = []

    def issue(self, tag, ins):
        self.A(ins)
        self.q.append(tag)

    def need(self, tag):
        if tag not in self.q:
            return
        idx = len(self.q) - 1 - self.q[::-1].index(tag)
        self.A("s_waitcnt vmcnt(%d)" % (len(self.q) - 1 - idx))
        self.q = self.q[idx + 1:]


class LQ:
    def __init__(self, A):
        self.A = A
        self.q = []

    def issue(self, tag, ins):
        self.A(ins)
        self.q.append(tag)

    def need(self, tag):
        if tag not in self.q:
            return
        idx = len(self.q) - 1 - self.q[::-1].index(tag)
        n = len(self.q) - 1 - idx
        self.A("s_waitcnt lgkmcnt(%d)" % min(n, 15))
        self.q = self.q[idx + 1:]

    def drain(self):
        self.A("s_waitcnt lgkmcnt(0)")
        self.q = []


def gen(A):
    name = "fused_kernel"
    kernel_begin(A, name)
    L = LQ(A)
    TS = OPT["ts"]
    tail = []
    OST = "" if OPT["ost"] == "no" else "sc1"

    def stamp(i, bar=False):
        if OPT["tsb"] == "c" and i < 9:
            return
        if TS and (bar or not (OPT["tsb"] and i < 7)):
            if OPT.get("rt") and i in (3, 6, 10, 8):
                return
            A("s_memtime s[96:97]")
            if OPT.get("rt") and i in (1, 5, 9, 7):
                A("s_memrealtime s[100:101]")
            L.drain()
            A("s_mov_b32 s%d, s96" % (STS + i))
            if OPT.get("rt") and i in (1, 5, 9, 7):
                A("s_mov_b32 s%d, s100" % (STS + {1: 3, 5: 6, 9: 10, 7: 8}[i]))

    def mf(d, a, b, c):
        A("v_mfma_f32_32x32x16_bf16 %s, %s, %s, %s" % (vr(d, 16), vr(a, 4), vr(b, 4), c))

    SM = OPT["sm"]

    def smf(d, a, b):
        A("v_smfmac_f32_32x32x32_bf16 %s, %s, %s, v%d" % (vr(d, 16), vr(a, 4), vr(b, 8), VIX))

    Lend = "Lend"
    V = VQ(A)
    FSH = int(OPT["fsh"])
    A("s_cmp_ge_u32 s2, 256")
    A("s_cbranch_scc1 %s" % Lend)
    A("s_load_dwordx16 s[36:51], s[0:1], 0")
    A("s_load_dwordx4 s[52:55], s[0:1], 64")
    A("s_memrealtime s[98:99]")
    if TS:
        A("s_memtime s[96:97]")
    A("v_lshrrev_b32 v3, 6, v0")
    A("v_and_b32 v%d, 63, v0" % VLN)
    if OPT["map"] == "32x1":
        A("s_lshr_b32 s%d, s2, 3 ; MAP32" % sHB)
        A("v_readfirstlane_b32 s%d, v3" % sW)
        A("s_and_b32 s%d, s2, 7" % sQB)
    elif OPT["map"] == "4x8":
        A("s_and_b32 s%d, s2, 7" % sHB)
        A("v_readfirstlane_b32 s%d, v3" % sW)
        A("s_lshl_b32 s%d, s%d, 2" % (sHB, sHB))
        A("s_bfe_u32 s%d, s2, 0x20003" % sT0)
        A("s_add_u32 s%d, s%d, s%d" % (sHB, sHB, sT0))
        A("s_lshr_b32 s%d, s2, 5" % sQB)
        assert OPT["ost"] == "sc1"
    elif OPT["map"] == "8x4":
        A("s_bfe_u32 s%d, s2, 0x20001 ; MAP84" % sHB)
        A("v_readfirstlane_b32 s%d, v3" % sW)
        A("s_lshl_b32 s%d, s%d, 3" % (sHB, sHB))
        A("s_bfe_u32 s%d, s2, 0x30003" % sT0)
        A("s_add_u32 s%d, s%d, s%d" % (sHB, sHB, sT0))
        A("s_and_b32 s%d, s2, 1" % sQB)
        A("s_lshl_b32 s%d, s%d, 2" % (sQB, sQB))
        A("s_lshr_b32 s%d, s2, 6" % sT0)
        A("s_add_u32 s%d, s%d, s%d" % (sQB, sQB, sT0))
        assert OPT["ost"] == "sc1"
    A("v_lshrrev_b32 v3, 3, v%d" % VLN)
    A("v_lshrrev_b32 v5, 4, v%d" % VLN)
    A("v_xor_b32 v5, v5, v%d" % VLN)
    A("v_and_b32 v5, 7, v5")
    A("v_mul_u32_u24 v3, 896, v3")
    A("v_lshl_add_u32 v%d, v5, 4, v3" % VXD)
    A("v_xor_b32 v5, 64, v%d" % VXD)
    A("v_add_u32 v%d, 6144, v5" % (VXD + 1))
    A("v_add_u32 v%d, 12288, v%d" % (VXD + 2, VXD))
    A("v_add_u32 v%d, 18432, v5" % (VXD + 3))
    A("v_lshrrev_b32 v3, 2, v%d" % VLN)
    A("v_mul_u32_u24 v3, 2688, v3")
    A("v_and_b32 v5, 3, v%d" % VLN)
    A("v_lshlrev_b32 v5, 4, v5")
    A("v_min_u32 v5, 40, v5")
    A("v_add_u32 v%d, v3, v5" % VWD)
    if OPT["rot"] == "q2h":
        A("s_lshl_b32 s%d, s%d, 1" % (sC, sHB))
        A("s_add_u32 s%d, s%d, s%d" % (sC, sC, sQB))
    elif OPT["rot"] == "q3h":
        A("s_mul_i32 s%d, s%d, 3" % (sC, sHB))
        A("s_add_u32 s%d, s%d, s%d" % (sC, sC, sQB))
    elif OPT["rot"] == "qh":
        A("s_add_u32 s%d, s%d, s%d" % (sC, sHB, sQB))
    elif OPT["rot"] == "3h":
        A("s_mul_i32 s%d, s%d, 3" % (sC, sHB))
    else:
        A("s_mov_b32 s%d, 0" % sC)
    A("s_mul_i32 s%d, s%d, 147" % (sT0, sC))
    A("s_lshr_b32 s%d, s%d, 10" % (sT0, sT0))
    A("s_mul_i32 s%d, s%d, 7" % (sT0, sT0))
    A("s_sub_u32 s%d, s%d, s%d" % (sC, sC, sT0))
    A("s_lshl_b32 s%d, s%d, 3" % (sXB, sQB))
    A("s_add_u32 s%d, s%d, s%d" % (sXB, sXB, sW))
    A("s_lshl_b32 s%d, s%d, 12" % (sKVB, sXB))
    A("s_mul_i32 s%d, s%d, %d" % (sXB, sXB, 32 * 896))
    A("s_lshl_b32 s%d, s%d, 12" % (sM4, sW))
    A("s_and_b32 s%d, s%d, 15" % (sT2, sHB))
    A("s_mul_i32 s%d, s%d, 56" % (sT2, sT2))
    A("s_lshr_b32 s%d, s%d, 2" % (sT0, sW))
    A("s_and_b32 s%d, s%d, 3" % (sT1, sW))
    A("s_mul_i32 s%d, s%d, %d" % (sDONE, sT1, 16 * 2688))
    A("s_add_u32 s%d, s%d, s%d" % (sDONE, sDONE, sT2))
    A("s_mul_i32 s%d, s%d, 896" % (sWB, sT0))
    A("s_add_u32 s%d, s%d, s%d" % (sWB, sWB, sDONE))
    A("s_add_u32 s%d, s%d, 896" % (sWB, sWB))
    A("s_mul_i32 s%d, s%d, %d" % (sMW, sT0, WSEC))
    A("s_lshl_b32 s%d, s%d, 10" % (sT1, sT1))
    A("s_add_u32 s%d, s%d, s%d" % (sMW, sMW, sT1))
    A("s_add_u32 s%d, s%d, s%d" % (sT3, sC, sT0))
    A("s_mov_b32 s%d, %d" % (SX + 2, 2048 * 896))
    A("s_mov_b32 s%d, 0x00020000" % (SX + 3))
    A("s_mov_b32 s%d, %d" % (SW + 2, 448 * 2688))
    A("s_mov_b32 s%d, 0x00020000" % (SW + 3))
    A("s_cmp_ge_u32 s%d, 16" % sHB)
    A("s_waitcnt lgkmcnt(0)")
    A("s_mov_b32 s%d, s36" % SX)
    A("s_mov_b32 s%d, s37" % (SX + 1))
    A("s_cselect_b32 s%d, s44, s38" % SW)
    A("s_cselect_b32 s%d, s45, s39" % (SW + 1))
    if TS:
        A("s_mov_b32 s%d, s96" % STS)

    WPOL = OPT["wpol"].replace(".", " ")
    XPOL = OPT["xpol"].replace(".", " ")
    WQG = [int(c) for c in OPT["wq"]]

    WST = OPT["wst"]

    def gw(i, pos=0):
        m = int(WST[2 * pos:2 * pos + 2], 16) if WST and i >= 2 else (0 if pos else 255)
        if pos == 0:
            V.q.append(("G", i))
        if not m:
            return
        if m != 255:
            A("s_bitcmp0_b32 %d, s%d" % (m, sW))
            A("s_cbranch_scc1 Lws_%d_%d" % (i, pos))
        A("s_mul_i32 s%d, s%d, %d" % (sT1, sC, 64 * 2688))
        A("s_add_u32 m0, s%d, %d" % (sMW, LWK + i * 4096))
        A("s_add_u32 s%d, s%d, s%d" % (sT1, sT1, sWB))
        A("buffer_load_dwordx4 v%d, s[8:11], s%d offen %s lds" % (VWD, sT1, WPOL))
        if 0 < pos < 4:
            A("s_add_u32 m0, s%d, %d" % (sM4, XSLOT[i & 1]))
        if m != 255:
            A.label("Lws_%d_%d" % (i, pos))

    def gq(p, i):
        A("s_mul_i32 s%d, s%d, %d" % (sT1, sCQ, 64 * 2688))
        A("s_lshr_b32 s%d, s%d, 2" % (sT0, sM4))
        A("s_add_u32 m0, s%d, %d" % (sT0, LB + p * 8192))
        A("s_add_u32 s%d, s%d, s%d" % (sT1, sT1, sDONE))
        V.issue(("G", i), "buffer_load_dwordx4 v%d, s[8:11], s%d offen %s lds" % (VWD if p < 3 else VWD2, sT1, WPOL))
        if p < 3:
            A("s_add_u32 s%d, s%d, 2" % (sCQ, sCQ))
            A("s_cmp_ge_u32 s%d, 7" % sCQ)
            A("s_cselect_b32 s%d, 7, 0" % sT1)
            A("s_sub_u32 s%d, s%d, s%d" % (sCQ, sCQ, sT1))

    def gx(i, g):
        if g == 0:
            A("s_lshl_b32 s%d, s%d, 7" % (sT2, sC))
            A("s_add_u32 m0, s%d, %d" % (sM4, XSLOT[i & 1]))
            A("s_add_u32 s%d, s%d, s%d" % (sT2, sT2, sXB))
        V.issue(("G", i), "buffer_load_dwordx4 v%d, s[4:7], s%d offen offset:%d %s lds" % (VXD + g, sT2, g * 1024, XPOL))
        gw(i, g + 1)
        if g == 3 and i < 6:
            A("s_add_u32 s%d, s%d, 1" % (sC, sC))
            A("s_cmp_eq_u32 s%d, 7" % sC)
            A("s_cselect_b32 s%d, 0, s%d" % (sC, sC))

    def wpieces(i):
        r = [lambda: gw(i)] if i < 7 else []
        return r + [(lambda p=p: gq(p, i)) for p in range(4) if WQG[p] == i]

    def xpieces(i):
        return [(lambda g=g: gx(i, g)) for g in range(4)] if i < 7 else []

    assert min(WQG) >= 1
    for f in wpieces(0) + xpieces(0):
        f()
    if OPT["g1"] == "early":
        gw(1)
        for f in xpieces(1):
            f()
    A("s_mov_b32 s%d, s52" % SDBG)
    A("s_mov_b32 s%d, s53" % (SDBG + 1))
    A("s_mov_b32 s%d, 256" % (SDBG + 2))
    A("s_mov_b32 s%d, 0x00020000" % (SDBG + 3))
    A("v_mov_b32 v%d, 0" % VFO)
    A("s_or_b32 s%d, s%d, s2" % (sT0, sW))
    A("s_cbranch_scc1 Lnononce")
    A("v_mov_b32 v%d, s98" % VN)
    A("v_mov_b32 v%d, s99" % (VN + 1))
    A("v_or_b32 v%d, 1, v%d" % (VN, VN))
    A("s_mov_b64 exec, 1")
    A("buffer_store_dwordx2 %s, v%d, s[32:35], 0 offen sc1" % (vr(VN, 2), VFO))
    A("s_mov_b64 exec, -1")
    A.label("Lnononce")
    for srd, k, size in ((SWS, 54, WS_USED if not TS else 128 << 20), (SG, 48, 896), (SOUT, 50, 2048 * 896)):
        A("s_mov_b32 s%d, s%d" % (srd, k))
        A("s_mov_b32 s%d, s%d" % (srd + 1, k + 1))
        A("s_mov_b32 s%d, %d" % (srd + 2, size))
        A("s_mov_b32 s%d, 0x00020000" % (srd + 3))
    A("s_cmp_ge_u32 s%d, 4" % sW)
    A("s_cselect_b32 s%d, s46, s40" % SWO)
    A("s_cselect_b32 s%d, s47, s41" % (SWO + 1))
    A("s_cselect_b32 s%d, 0, -1" % sT0)
    A("s_mov_b32 s%d, %d" % (SWO + 2, 448 * 896))
    A("s_mov_b32 s%d, 0x00020000" % (SWO + 3))
    A("v_and_b32 v%d, s%d, v%d" % (VWD2, sT0, VWD))
    A("v_lshrrev_b32 v3, 4, v%d" % VLN)
    A("v_lshl_add_u32 v5, v3, 1, s%d" % sT3)
    A("v_subrev_u32 v24, 7, v5")
    A("v_min_u32 v5, v5, v24")
    A("v_and_b32 v24, 15, v%d" % VLN)
    A("v_lshlrev_b32 v15, 1, v24")
    A("v_lshl_add_u32 v15, v5, 7, v15")
    A("s_and_b32 s%d, s%d, 3" % (sT0, sW))
    A("s_lshl_b32 s%d, s%d, 5" % (sT0, sT0))
    V.issue("gate", "buffer_load_ushort v%d, v15, s[16:19], s%d offen" % (VGT, sT0))
    A("v_lshlrev_b32 v24, 6, v24")
    A("v_lshl_add_u32 v24, v3, 13, v24")
    A("s_lshr_b32 s%d, s%d, 2" % (sT0, sM4))
    A("s_add_u32 s%d, s%d, %d" % (sT0, sT0, LB + 48))
    A("v_add_u32 v%d, s%d, v24" % (VGP, sT0))
    A("s_cmp_ge_u32 s%d, 7" % sT3)
    A("s_cselect_b32 s%d, 7, 0" % sT0)
    A("s_sub_u32 s%d, s%d, s%d" % (sCQ, sT3, sT0))
    A("s_lshl_b32 s%d, s%d, 4" % (sOP, sKVB))
    A("s_lshl_b32 s%d, s%d, 11" % (sT0, sHB))
    A("s_add_u32 s%d, s%d, s%d" % (sOP, sOP, sT0))
    A("s_add_u32 s%d, s%d, %d" % (sOP, sOP, WS_O))
    A("s_lshr_b32 s%d, s%d, 3" % (sFOP, sKVB))
    A("s_lshr_b32 s%d, s%d, 3" % (sT1, sHB))
    A("s_lshl_b32 s%d, s%d, 7" % (sT1, sT1))
    A("s_add_u32 s%d, s%d, s%d" % (sFOP, sFOP, sT1))
    A("s_and_b32 s%d, s%d, 7" % (sT1, sHB))
    A("s_lshl_b32 s%d, s%d, 3" % (sT1, sT1))
    A("s_add_u32 s%d, s%d, s%d" % (sFOP, sFOP, sT1))
    A("s_add_u32 s%d, s%d, %d" % (sFOP, sFOP, WS_FO))
    A("s_lshl_b32 s%d, s%d, 18" % (sKVH, sHB))
    A("s_add_u32 s%d, s%d, s%d" % (sKVB, sKVB, sKVH))
    A("s_mov_b32 s%d, 0xfe" % sPEND)
    A("s_lshl_b32 s%d, s%d, 3" % (sFKV, sHB))
    A("s_add_u32 s%d, s%d, s%d" % (sFKV, sFKV, sW))
    A("s_lshl_b32 s%d, s%d, 10" % (sFKV, sFKV))
    A("s_add_u32 s%d, s%d, %d" % (sFKV, sFKV, WS_FKV))
    A("s_getreg_b32 s%d, hwreg(HW_REG_XCC_ID, 0, 8)" % sXC)
    A("s_lshl_b32 s%d, s%d, 24" % (sXC, sXC))
    A("s_lshl_b32 s%d, s%d, 8" % (sXT, sQB))
    A("s_add_u32 s%d, s%d, %d" % (sXT, sXT, WS_XT))
    A("s_mov_b32 s%d, %s" % (sQS, f32(QSCALE)))
    A("s_mov_b32 s%d, %s" % (sQS + 1, f32(QSCALE)))
    A("s_cmp_ge_u32 s%d, 16" % sHB)
    A("s_cselect_b32 s%d, -1.0, 1.0" % sGA)
    A("s_cselect_b32 s%d, 1.0, 0" % sGB)
    A("s_and_b32 s%d, s2, 7" % sTB)
    A("s_lshl_b32 s%d, s%d, 2" % (sTB, sTB))
    A("s_lshr_b32 s%d, s2, 5" % sNB)
    A("s_lshr_b32 s%d, s2, 3" % sT0)
    if OPT["cmix"]:
        A("s_add_u32 s%d, s%d, s%d ; CMIX" % (sT0, sT0, sNB))
    A("s_and_b32 s%d, s%d, 3" % (sT0, sT0))
    A("s_add_u32 s%d, s%d, s%d" % (sTB, sTB, sT0))
    A("s_bfe_u32 s%d, s%d, 0x10001" % (sT0, sW))
    A("s_mul_i32 s%d, s%d, %d" % (sWOB_, sT0, 224 * 896))
    A("s_and_b32 s%d, s%d, 1" % (sT0, sW))
    A("s_mul_i32 s%d, s%d, %d" % (sT0, sT0, 56 * 896))
    A("s_add_u32 s%d, s%d, s%d" % (sWOB_, sWOB_, sT0))
    A("s_min_u32 s%d, s%d, 6" % (sT0, sNB))
    A("s_lshl_b32 s%d, s%d, 7" % (sT0, sT0))
    A("s_add_u32 s%d, s%d, s%d" % (sWOB_, sWOB_, sT0))
    A("s_lshr_b32 s%d, s%d, 2" % (sT0, sW))
    A("s_and_b32 s%d, s%d, 3" % (sT1, sW))
    A("s_lshl_b32 s%d, s%d, 15" % (sMWO, sT0))
    A("s_mul_i32 s%d, s%d, 7168" % (sT3, sT1))
    A("s_add_u32 s%d, s%d, s%d" % (sMWO, sMWO, sT3))
    A("s_add_u32 s%d, s%d, %d" % (sMWO, sMWO, LE))
    A("s_lshl_b32 s%d, s%d, 3" % (sT3, sTB))
    A("s_add_u32 s%d, s%d, s%d" % (sT3, sT3, sW))
    A("s_lshl_b32 s%d, s%d, 7" % (sFOC, sT3))
    A("s_add_u32 s%d, s%d, %d" % (sFOC, sFOC, WS_FO))
    A("s_lshl_b32 s%d, s%d, 14" % (sOC, sT3))
    A("s_add_u32 s%d, s%d, %d" % (sOC, sOC, WS_O))
    A("s_lshr_b32 s%d, s%d, 1" % (sT0, sT1))
    A("s_lshl_b32 s%d, s%d, 15" % (sT0, sT0))
    A("s_and_b32 s%d, s%d, 1" % (sT1, sT1))
    A("s_mul_i32 s%d, s%d, 14336" % (sT1, sT1))
    A("s_add_u32 s%d, s%d, s%d" % (sT0, sT0, sT1))
    A("s_add_u32 s%d, s%d, %d" % (sT0, sT0, LE))
    A("v_bfe_u32 v3, v%d, 2, 2" % VLN)
    A("v_bfe_u32 v5, v%d, 4, 1" % VLN)
    A("v_lshlrev_b32 v5, 5, v5")
    A("v_lshl_add_u32 v3, v3, 6, v5")
    A("v_and_b32 v5, 3, v%d" % VLN)
    A("v_lshl_add_u32 v3, v5, 3, v3")
    A("v_add_u32 v3, s%d, v3" % sT0)
    A("v_lshrrev_b32 v5, 5, v%d" % VLN)
    A("v_lshl_add_u32 v%d, v5, 8, v3" % VTE)
    A("v_mul_u32_u24 v5, 768, v5")
    A("v_add_u32 v%d, v5, v3" % VTO)
    A("v_bfe_u32 v3, v%d, 2, 3" % VLN)
    A("v_mul_u32_u24 v3, 896, v3")
    A("v_lshrrev_b32 v5, 5, v%d" % VLN)
    A("v_lshl_add_u32 v3, v5, 6, v3")
    A("v_and_b32 v5, 3, v%d" % VLN)
    A("v_lshl_add_u32 v124, v5, 4, v3")
    A("v_lshlrev_b32 v%d, 4, v%d" % (VL16, VLN))
    A("v_and_b32 v3, 31, v%d" % VLN)
    A("v_lshrrev_b32 v24, 5, v%d" % VLN)
    A("v_bfe_u32 v25, v%d, 1, 3" % VLN)
    A("v_xor_b32 v25, v25, v24")
    A("v_lshlrev_b32 v25, 4, v25")
    A("v_lshl_add_u32 v25, v3, 7, v25")
    A("v_add_u32 v%d, s%d, v25" % (XA, sM4))
    for ks in range(1, 4):
        A("v_xor_b32 v%d, %d, v%d" % (XA + ks, ks * 32, XA))
    A("v_bfe_u32 v25, v%d, 2, 2" % VLN)
    A("v_lshl_add_u32 v25, v24, 3, v25")
    A("v_bfe_u32 v26, v%d, 4, 1" % VLN)
    A("v_lshlrev_b32 v26, 5, v26")
    A("v_lshl_add_u32 v25, v25, 6, v26")
    A("v_and_b32 v26, 3, v%d" % VLN)
    A("v_lshl_add_u32 v25, v26, 3, v25")
    A("v_add_u32 v%d, %d, v25" % (WA, LWK))
    A("v_add_u32 v%d, %d, v25" % (WQ, LB))
    A("v_cmp_gt_u32 %s, 32, v%d" % (sr(sLOW, 2), VLN))
    A("v_cmp_eq_u32 %s, 24, v3" % sr(sL24, 2))
    if OPT["zv"]:
        A("v_lshrrev_b32 v29, 2, v3")
    A("s_lshr_b32 s%d, s%d, 2" % (sT0, sW))
    A("s_lshl_b32 s%d, s%d, 14" % (sT0, sT0))
    A("v_add_u32 v%d, s%d, v%d" % (VKA, sT0, VL16))
    A("v_add_u32 v%d, %d, v%d" % (VKD, LD, VKA))
    A("v_add_u32 v3, s%d, v%d" % (sQB, VLN))
    A("v_and_b32 v3, 7, v3")
    A("v_lshlrev_b32 v123, %d, v3" % FSH)
    A("v_and_b32 v3, 7, v%d" % VLN)
    A("v_lshlrev_b32 v3, 11, v3")
    A("v_mov_b32 v24, 0x3f80")
    A("v_mov_b32 v25, 0x3f803f80")
    if OPT["zv"]:
        A("v_cndmask_b32 v25, 0, v25, %s" % sr(sL24, 2))
        A("v_cmp_eq_u32 %s, 6, v29" % sr(sL24, 2))
    A("v_add_u32 v26, s%d, v%d" % (sM4, VL16))
    if SM:
        A("v_lshrrev_b32 v%d, 1, v%d" % (VKP, VL16))
        A("v_xor_b32 v%d, v%d, v%d" % (VKP, VKP, VL16))
        A("v_and_b32 v%d, 64, v%d" % (VKP, VKP))
        A("v_mul_u32_u24 v%d, 3, v%d" % (VKP, VKP))
        A("v_xor_b32 v%d, v%d, v%d" % (VKP, VKP, VL16))
        A("v_add_u32 v%d, s%d, v%d" % (VKL, sM4, VKP))
        A("v_mov_b32 v%d, 0xdddddddd" % VIX)
    A("s_lshr_b32 s%d, s%d, 1" % (sT0, sM4))
    A("s_add_u32 s%d, s%d, %d" % (sT0, sT0, LE))
    A("s_xor_b32 s%d, s%d, 8192" % (sT1, sT0))
    A("s_add_u32 s%d, s%d, %d" % (sGO, sM4, LC))
    A("v_mov_b32 v%d, 0" % VFC)
    A("v_mov_b32 v%d, 0" % (VFC + 1))
    A("v_add_u32 v28, s%d, v%d" % (sT0, VL16))
    A("v_add_u32 v27, s%d, v%d" % (sT1, VL16))
    if OPT["g1"] == "early":
        for f in wpieces(1)[1:]:
            f()
    else:
        for f in wpieces(1) + xpieces(1):
            f()

    if OPT["pf"] == "late":
        A("s_getpc_b64 s[54:55]")
        A.label("Lpc")
        A("s_lshr_b32 s%d, s2, 3" % sT0)
        A("s_mul_i32 s%d, s%d, 768" % (sT0, sT0))
        A("v_min_u32 v29, 5, v%d" % VLN)
        A("v_lshlrev_b32 v29, 7, v29")
        A("v_add_u32 v29, s%d, v29" % sT0)
        A("v_min_u32 v29, Lcode_end-Lpc-4, v29")
        V.issue("pf", "global_load_dword v30, v29, s[54:55]")
    for c in OPT["tlb"] or "":
        if c == "k":
            A("v_lshlrev_b32 v29, 4, v3")
            V.issue("tlb", "buffer_load_dword v30, v29, s[12:15], s%d offen sc1" % sKVH)
        if c == "K":
            V.issue("tlb", "buffer_load_dword v30, v%d, s[12:15], s%d offen sc1" % (VFO, sKVB))
        if c == "f":
            V.issue("tlb", "buffer_load_dword v30, v%d, s[12:15], s%d offen sc1" % (VFO, sFKV))
        if c == "o":
            V.issue("tlb", "buffer_load_dword v30, v%d, s[12:15], s%d offen sc1" % (VFO, sOP))
        if c == "c":
            V.issue("tlb", "buffer_load_dword v30, v3, s[12:15], s%d offen sc1" % sOC)
        if c == "w":
            V.issue("tlb", "buffer_load_dword v30, v%d, %s, s%d offen" % (VFO, sr(SWO, 4), sWOB_))
        if c == "y":
            V.issue("tlb", "buffer_load_dword v30, v%d, s[28:31], s%d offen sc1" % (VFO, sXB))

    AK, AV, AQ = 32, 48, 64

    def poll(reg, sa=sFKV, va=123):
        return "buffer_load_dwordx2 %s, v%d, s[12:15], s%d offen sc1" % (vr(reg, 2), va, sa)

    def flag(sa, reg=VN, tag="flag"):
        A("s_mov_b64 exec, 1")
        V.issue(tag, "buffer_store_dwordx2 %s, v%d, s[12:15], s%d offen sc1" % (vr(reg, 2), VFO, sa))
        A("s_mov_b64 exec, -1")

    def kvpick(j):
        A("s_ff1_i32_b32 s%d, s%d" % (sT0, sT0))
        if j is None:
            A("s_mov_b32 m0, s%d" % sGO)
            A("s_add_u32 s%d, s%d, 32768" % (sGO, sGO))
        else:
            A("s_add_u32 m0, s%d, %d" % (sM4, RING[j % 3]))
        A("s_bitset0_b32 s%d, s%d" % (sPEND, sT0))
        A("s_lshl_b32 s%d, s%d, 15" % (sT0, sT0))
        A("s_add_u32 s%d, s%d, s%d" % (sT0, sT0, sKVB))
        A("s_and_b32 s%d, s%d, 0x3ffff" % (sT0, sT0))
        A("s_or_b32 s%d, s%d, s%d" % (sKS, sT0, sKVH))

    def kvld(p):
        return "buffer_load_dwordx4 v%d, s[12:15], s%d offen offset:%d sc1 lds" % (VL16, sKS, p * 1024)

    def kvdma():
        kvpick(None)
        for p in range(4):
            A(kvld(p))

    def wold(stage, g, setm=False):
        if g in (0, 4) or setm:
            A("s_add_u32 m0, s%d, %d" % (sMWO, (g & 4) * 1024))
        A("s_add_u32 s%d, s%d, %d" % (sT0, sWOB_, stage * 112 * 896 + g * 7168 - (g & 3) * 1024))
        V.issue(("wo", stage), "buffer_load_dwordx4 v124, %s, s%d offen offset:%d lds" % (sr(SWO, 4), sT0, (g & 3) * 1024))

    def xcc_put():
        A("s_lshl_b32 s%d, s%d, 3" % (sT0, sHB))
        A("v_mov_b32 v%d, v%d" % (VFA, VN))
        A("v_xor_b32 v%d, s%d, v%d" % (VFA + 1, sXC, VN + 1))
        A("s_add_u32 s%d, s%d, s%d" % (sT0, sT0, sXT))
        flag(sT0, VFA, "xput")

    def oprobe():
        A("buffer_load_dword v4, v3, s[12:15], s%d offen offset:2044 sc1" % sOC)

    HOOKS = OPT["hk"].split(".")
    pstate = dict(n=0)

    def hook(nm):
        if nm == OPT["kf"]:
            assert pstate["n"] == 0
            V.need("kv")
            flag(sDONE)
            if OPT["kvs"] == "late":
                for p in range(4):
                    V.issue("kv2", "buffer_store_dwordx4 %s, v%d, s[12:15], s%d offen offset:%d" % (vr(K0 + 4 * p, 4), VL16, sKVB, p * 1024))
            if TS and not OPT["tsb"]:
                A("s_memtime s[96:97]")
                L.drain()
                A("s_mov_b32 s%d, s96" % (STS + 4))
        if nm not in HOOKS:
            return
        idx = pstate["n"]
        pstate["n"] += 1
        if idx == 0:
            A(poll(VFC))
            return
        A("s_cmp_ge_u32 s%d, %d" % (sGO, LE))
        A("s_cbranch_scc1 Lchk_%d" % idx)
        A("v_cmp_eq_u64 %s, %s, %s" % (sr(sFM, 2), vr(VFC, 2), vr(VN, 2)))
        A("s_and_b32 s%d, s%d, s%d" % (sT0, sFM, sPEND))
        A("s_cbranch_scc1 Lgo_%d" % idx)
        A.label("Lgo_%d_ret" % idx)
        if nm != OPT["xp"]:
            A(poll(VFC))
        A.label("Lchk_%d" % idx)
        if nm == OPT["xp"]:
            A(poll(VFC))
        tail.append(("go", idx))

    QP = OPT["qp"].split(".")
    QP += [""] * (8 - len(QP))
    assert sorted("".join(QP)) == list("0123456")
    LO = int(OPT["lo"])
    items = []
    barpos = {}
    for i in range(8):
        barpos[i] = max(len(items) - (LO if i < 7 else 0), 0)
        if i < 7:
            items += [(sec, i, ks, i) for ks in range(4) for sec in ("K", "V")]
        for c in QP[i]:
            c = int(c)
            av = max(min(WQG[c >> 1] + 1, 7), c)
            assert av <= i, (c, i)
            items += [("Q", c, ks, av) for ks in range(4)]
    needbar7 = any(it[3] > 6 for it in items)
    bufs = [80, 84, 88, 92, 240, 244, 248, 252]
    st_ = dict(rd=0, bar=-1)
    bufof = {}
    first = dict(K=True, V=True, Q=True)

    def pump(ex):
        while st_["rd"] < len(items) and bufs and items[st_["rd"]][3] <= st_["bar"] and st_["rd"] - ex < int(OPT["look"]):
            n = st_["rd"]
            kind, c, ks, _ = items[n]
            b = bufs.pop(0)
            bufof[n] = b
            base, off = (WQ, 0) if kind == "Q" else (WA, WSEC if kind == "V" else 0)
            for t in range(2):
                L.issue(("w", n), "ds_read_b64_tr_b16 %s, v%d offset:%d" % (vr(b + 2 * t, 2), base, off + c * 4096 + ks * 1024 + t * 256))
            st_["rd"] += 1

    def item(n):
        kind, c, ks, _ = items[n]
        pump(n)
        L.need(("x", c, ks))
        L.need(("w", n))
        x, b = XF + 16 * c + 4 * ks, bufof[n]
        acc = dict(K=AK, V=AV, Q=AQ)[kind]
        cc = "0" if first[kind] else vr(acc, 16)
        first[kind] = False
        if kind == "V":
            mf(acc, x, b, cc)
        else:
            mf(acc, b, x, cc)
        bufs.append(b)
        pump(n + 1)

    def patch(p):
        A("s_mov_b64 exec, 0x%x" % (0xffff << (16 * p)) if p < 2 else "s_mov_b32 exec_lo, 0")
        if p >= 2:
            A("s_mov_b32 exec_hi, 0x%x" % (0xffff << (16 * (p - 2))))
        L.issue("g", "ds_write_b16 v%d, v%d" % (VGP, VGT))
        A("s_mov_b64 exec, -1")

    vq = []
    for i in range(7):
        for f in vq:
            f()
        V.need(("G", i))
        L.need("g")
        A("s_barrier")
        st_["bar"] = i
        if OPT["tsb"] == "a":
            if i:
                A("s_mov_b32 s%d, s96" % (STS + i))
            if i < 6:
                A("s_memtime s[96:97]")
        elif i == 0:
            stamp(1)
        for ks in range(4):
            L.issue(("x", i, ks), "ds_read_b128 %s, v%d offset:%d" % (vr(XF + 16 * i + 4 * ks, 4), XA + ks, XSLOT[i & 1]))
            if ks == 0:
                pump(barpos[i])
        for p in range(4):
            if WQG[p] == i:
                patch(p)
        vq = wpieces(i + 2)
        xq = xpieces(i + 2)
        if i == 2:
            vq.append(lambda: V.issue("n", "buffer_load_dwordx2 %s, v%d, s[32:35], 0 offen sc1" % (vr(VN, 2), VFO)))
        if vq:
            vq.pop(0)()
        for n in range(barpos[i], barpos[i + 1]):
            item(n)
            if xq and items[n][0] == "V" and items[n][1] == i:
                L.need(("x", i, 3))
                vq += xq
                xq = []
            if vq:
                vq.pop(0)()
        assert not xq
    assert not vq
    stamp(2)
    rest = list(range(barpos[7], len(items)))
    if needbar7:
        pre, rest = [n for n in rest if items[n][3] <= 6], [n for n in rest if items[n][3] > 6]
        assert not pre or pre[-1] < rest[0]
    else:
        pre, rest = rest, []

    def fill(k, nop=0):
        for _ in range(k):
            if pre:
                item(pre.pop(0))
                nop -= 8
        if nop > 0:
            A("s_nop %d" % (nop - 1))
    A("s_lshl_b32 s%d, s%d, %d" % (sDONE, sQB, FSH))
    A("s_add_u32 s%d, s%d, s%d" % (sDONE, sDONE, sFKV))
    fill(2, 10)
    for r in range(8):
        A("v_cvt_pk_bf16_f32 v%d, v%d, v%d" % (K0 + r, AK + 2 * r, AK + 2 * r + 1))
    A("v_cndmask_b32 v%d, v%d, v24, %s" % (K0 + 6, K0 + 6, sr(sLOW, 2)))
    A("v_cndmask_b32 v%d, v%d, 0, %s" % (K0 + 7, K0 + 7, sr(sLOW, 2)))
    for p in range(2):
        V.issue("kv", "buffer_store_dwordx4 %s, v%d, s[12:15], s%d offen offset:%d %s" % (vr(K0 + 4 * p, 4), VKP if SM else VL16, sKVB, p * 1024, "" if OPT["kvs"] == "no" else "sc1"))
    fill(1)
    for r in range(8):
        A("v_cvt_pk_bf16_f32 v%d, v%d, v%d" % (V0 + r, AV + 2 * r, AV + 2 * r + 1))
    fill(1)
    for r in range(8):
        A("v_cndmask_b32 v%d, v%d, v25, %s" % (V0 + r, V0 + r, sr(sL24, 2)))
    for p in range(2, 4):
        V.issue("kv", "buffer_store_dwordx4 %s, v%d, s[12:15], s%d offen offset:%d %s" % (vr(K0 + 4 * p, 4), VL16, sKVB, p * 1024, "" if OPT["kvs"] == "no" else "sc1"))
    if OPT["kvs"] == "both":
        for p in range(4):
            V.issue("kv2", "buffer_store_dwordx4 %s, v%d, s[12:15], s%d offen offset:%d" % (vr(K0 + 4 * p, 4), VL16, sKVB, p * 1024))
    V.need("n")
    A("v_cmp_eq_u64 vcc, 0, %s" % vr(VN, 2))
    if needbar7:
        V.need(("G", 7))
        for p in range(4):
            if WQG[p] == 7:
                patch(p)
    for p in range(4):
        L.issue("kv", "ds_write_b128 v%d, %s offset:%d" % (VKL if SM and p < 2 else 26, vr(K0 + 4 * p, 4), LA + p * 1024))
        fill(1)
    A("s_cbranch_vccnz Lnonce_wait")
    A.label("Lnonce_ok")
    tail.append(("nonce",))
    fill(99)
    if needbar7:
        L.need("g")
        A("s_barrier")
        st_["bar"] = 8
        for k, n in enumerate(rest):
            item(n)
            hook("q%d" % k)
    stamp(3)
    hook("e0")
    A("s_nop 11")
    A("v_mul_f32 v%d, %s, v%d" % (VG, f32(-LOG2E), AQ + 12))
    for r in range(8):
        A("v_pk_mul_f32 %s, %s, %s" % (vr(AQ + 2 * r, 2), vr(AQ + 2 * r, 2), sr(sQS, 2)))
    A("v_exp_f32 v%d, v%d" % (VG, VG))
    for r in range(8):
        A("v_cvt_pk_bf16_f32 v%d, v%d, v%d" % (QA + r, AQ + 2 * r, AQ + 2 * r + 1))
    A("v_cndmask_b32 v%d, v%d, 0, %s" % (QA + 6, QA + 6, sr(sLOW, 2)))
    if OPT["zq"]:
        A("v_cndmask_b32 v%d, v%d, 0, %s" % (QA + 7, QA + 7, sr(sLOW, 2)))
    A("v_add_f32 v%d, 1.0, v%d" % (VG, VG))
    mf(S[1], K0, QA, "0")
    mf(S[1], K1, QA + 4, vr(S[1], 16))
    L.issue("qx", "ds_write_b128 v28, %s" % vr(QA, 4))
    A("v_rcp_f32 v%d, v%d" % (VG, VG))
    A("v_mov_b32 v24, s%d" % sGB)
    A("v_and_b32 v122, 31, v%d" % VLN)
    A("v_fma_f32 v%d, s%d, v%d, v24" % (VG, sGA, VG))
    A("v_lshlrev_b32 v122, 3, v122")
    hook("e1")
    if OPT["zo"] == "e":
        for r in range(0, 32, 2):
            A("v_mov_b64 %s, 0" % vr(O[0] + r, 2))
    else:
        A("s_nop 6")
    s = S[1]
    A("v_max3_f32 v%d, v%d, v%d, v%d" % (E, s, s + 1, s + 2))
    A("v_max3_f32 v%d, v%d, v%d, v%d" % (E + 1, s + 3, s + 4, s + 5))
    A("v_max3_f32 v%d, v%d, v%d, v%d" % (E + 2, s + 6, s + 7, s + 8))
    A("v_max3_f32 v%d, v%d, v%d, v%d" % (E + 3, s + 9, s + 10, s + 11))
    A("v_max3_f32 v%d, v%d, v%d, v%d" % (E, E, s + 12, s + 13))
    A("v_max3_f32 v%d, v%d, v%d, v%d" % (E + 1, E + 1, s + 14, s + 15))
    A("v_max3_f32 v%d, v%d, v%d, v%d" % (E, E, E + 2, E + 3))
    A("v_max_f32 v%d, v%d, v%d" % (E, E, E + 1))
    A("v_mov_b32 v%d, v%d" % (E + 1, E))
    A("s_nop 1")
    A("v_permlane32_swap_b32 v%d, v%d" % (E, E + 1))
    A("s_nop 1")
    A("v_max_f32 v%d, v%d, v%d" % (E, E, E + 1))
    A("v_cvt_pk_bf16_f32 v%d, -v%d, 0" % (E, E))
    A("v_cndmask_b32 v%d, v%d, v%d, %s" % (QA + 6, QA + 6, E, sr(sLOW, 2)))
    L.issue("qx", "ds_write_b128 v28, %s offset:1024" % vr(QA + 4, 4))
    hook("p3")
    L.drain()
    A("s_barrier")
    stamp(5)
    if OPT["tsb"] == "s":
        stamp(1, True)

    def rd(tag, dst, i, part):
        sl = RING[(i >> 2) % 3]
        base, off = (VKD, 0) if sl == LD else (VKA, sl)
        L.issue(tag, "ds_read_b128 %s, v%d offset:%d" % (vr(dst, 4), base, off + (i & 3) * 4096 + part * 1024))

    A("s_setprio 2")
    rd("K0", K0, 0, 0)
    rd("K1", K1, 0, 1)
    L.issue("QB", "ds_read_b128 %s, v27" % vr(QB, 4))
    L.issue("QB", "ds_read_b128 %s, v27 offset:1024" % vr(QB + 4, 4))
    hook("p3b")
    for r in range(4):
        A("v_mov_b32 v%d, -1" % (252 + r))
    A("v_add_u32 v%d, s%d, v%d" % (VXW, sM4, VL16))
    A("v_xor_b32 v%d, 0x4000, v%d" % (VXW + 1, VXW))
    Q = [QA, QB]
    assert needbar7
    vm = {}
    WJ = [int(c) for c in OPT["wj"]]
    WB = [int(c) for c in OPT["wb"]]
    NV = len(OPT["vg"])
    XW = {3: ["pois"]}
    for z in range(2):
        XW.setdefault(WB[z], []).append(("wo", z))

    def barcnt(j):
        tags = [t for t in XW.get(j, []) + [("kv", j + 1)] if t in V.q]
        L.q = []
        if not tags:
            return "s_waitcnt lgkmcnt(0)"
        idx = max(len(V.q) - 1 - V.q[::-1].index(t) for t in tags)
        n = len(V.q) - 1 - idx
        V.q = V.q[idx + 1:]
        return "s_waitcnt vmcnt(%d) lgkmcnt(0)" % n
    carry = []
    for j in range(7):
        ops = []
        if j <= 4:
            ops += [(lambda p=p, j=j: V.issue(("kv", j + 3), kvld(p))) for p in range(4)]
        if j <= 1:
            ops.append(lambda: V.issue("poll", poll(VFC)))
        if j == 1:
            ops += [(lambda e=e: V.issue("pois", "buffer_store_dwordx4 v[252:255], v%d, s[12:15], s%d offen offset:%d sc1" % (VL16, sOP, e * 1024))) for e in range(2)]
        if j == 3:
            ops += [lambda: flag(sFOP)]
        if j == 6:
            ops.append(lambda: V.issue("opoll", poll(VFC, sFOC, 122)))
        for z in range(2):
            if j == WJ[z]:
                assert not carry
                carry = [(z, g) for g in range(7)]
        room = 7 * NV - len(ops)
        for k, (z, g) in enumerate(carry[:room]):
            assert j < WB[z]
            ops.append(lambda z=z, g=g, k=k: wold(z, g, k == 0))
        carry = carry[room:]
        sl = NV * (8 * j + 7)
        for k, o in enumerate(ops):
            vm.setdefault(sl, []).append(o)
            sl += 1
    assert not carry
    vm.setdefault(NV * int(OPT["opr"]), []).append(oprobe)
    sc = S[0]
    qof = lambda u: (u & 1) ^ (1 if u >= 62 else 0)

    def states(n0):
        n, skip = 0, None
        for l in A.lines[n0:]:
            t = l.split(";")[0].strip()
            if skip:
                if t == skip + ":":
                    skip = None
                continue
            if not t or t.endswith(":"):
                continue
            n += int(t.split()[1]) + 1 if t.startswith("s_nop") else 1
            if t.startswith("s_cbranch") and t.split()[1].startswith(("Lchk", "Lbar")):
                skip = t.split()[1]
        return n
    late = {}
    SO = S[0] if SM else S[1]
    VG_ = OPT["vg"]
    WG_ = OPT["wg"]
    W0 = [int(c) for c in OPT["w0"].split(".")]
    VDB = OPT["vdb"]
    VB = [[24, E], [V0, V1]] if VDB else [[V0, V1]] * 2
    KP = OPT["kpk"]

    def place(u, g):
        j, st = u >> 3, u & 7
        if g == "0" and 1 <= u <= 6:
            hook("s%d" % (u - 1))
        if g == KP[1] and st == int(KP[0]) and j <= 4 and u >= 7 or (u == 7 and g == "0" and KP[0] != "7"):
            if j <= 2:
                A("v_cmp_eq_u64 %s, %s, %s" % (sr(sFM, 2), vr(VFC, 2), vr(VN, 2)))
            A("s_and_b32 s%d, s%d, s%d" % (sT0, sFM, sPEND))
            A("s_cbranch_scc0 Lslow_%d" % j)
            A.label("Lslow_%d_ret" % j)
            tail.append(("slow", j))
            kvpick(j + 3)
        if g == "0" and u == 47:
            A("v_lshrrev_b32 v122, 8, v3")
        if g == "0" and u == 62:
            V.need("opoll")
            A("v_cmp_ne_u64 vcc, %s, %s" % (vr(VFC, 2), vr(VN, 2)))
            A("s_cbranch_vccnz Lpois")
            A.label("Lpois_ret")
            tail.append(("pois",))
        for k, c in enumerate(VG_):
            if c == g:
                for o in vm.get(NV * u + k, []):
                    o()
        for stage in range(2):
            q = u - W0[stage]
            for k, c in enumerate(WG_):
                n = len(WG_) * q + k
                if c == g and q >= 0 and n < 32 and OPT["wo"]:
                    hl, s_, nt, t = n >> 3, (n >> 2) & 1, (n >> 1) & 1, n & 1
                    g0 = 7 * hl + (5 if (s_, t) == (1, 1) else 4 * s_ + 2 * t)
                    reg = 128 + 64 * stage + 2 * n
                    L.issue("wo", "ds_read_b64_tr_b16 %s, v%d offset:%d" % (
                        vr(reg, 2), VTO if g0 & 1 else VTE, (g0 >> 1) * 1024 + nt * 512 + (256 if g0 & 1 else 0)))
                    wdone[stage] = u

    wdone = {}
    for u in range(65):
        j, st, i, a = u >> 3, u & 7, u >> 1, u & 1
        barb = (st == 6 and j < 7) or u == 63
        if u in late:
            A("s_cbranch_scc0 Lbarl_%d" % u)
            if late[u]:
                A(late[u])
            A("s_barrier")
            A.label("Lbarl_%d" % u)
        if u:
            A("s_setprio 2")
        if u == 7:
            stamp(7)
        elif OPT["tsb"] is True and st == 7 and j < 7:
            stamp(j, True)
        if u == 64:
            for q in range(4):
                L.issue(("or", q), "ds_read_b128 %s, v%d offset:%d" % (vr(SO + 4 * q, 4), VXW + 1, LA + q * 1024))
        pos = {}
        sc = S[u & 1]

        def sm(h):
            L.need("K%d" % h)
            if u == 1:
                L.need("QB")
            mf(sc, K0 + 4 * h, Q[qof(u)] + 4 * h, vr(sc, 16) if h else "0")
            pos["s%d" % h] = len(A.lines)
            if a == 1 and i + 1 < 32:
                rd("K%d" % h, K0 + 4 * h, i + 1, h)

        def pv(h):
            if u:
                t = (u - 1) >> 1
                L.need(("V", h, t))
                smf(O[qof(u - 1)], VB[t & 1][h], S[(u - 1) & 1] + 8 * h)
                pos["p%d" % h] = len(A.lines)
            elif OPT["zo"] == "l":
                for r in range(16 * h, 16 * h + 16, 2):
                    A("v_mov_b64 %s, 0" % vr(O[0] + r, 2))
            ts_ = []
            if not VDB or u == 0:
                ts_ = [i] if a == 0 else []
            if VDB == "o":
                ts_ += [i + 1] if a == 1 else []
            if VDB == "e":
                ts_ += [i + 1] if a == (1 if i & 3 == 3 else 0) else []
            if VDB == "b":
                ts_ = [i] if a == 0 and i & 3 != 3 else [i + 1] if a == 1 and i & 3 == 2 else []
            for t in ts_:
                if t < 32:
                    rd(("V", h, t), VB[t & 1][h], t, 2 + h)

        def pad(frm, at, need=12, cap=16):
            k = min(need - states(pos[frm]), cap)
            if k > 0:
                A.lines.insert(at, "    s_nop %d" % (k - 1))
                for key in pos:
                    if pos[key] > at:
                        pos[key] += 1

        if u == 64:
            pv(0)
            pv(1)
            break
        if u == 63:
            pv(0); place(u, "0"); pv(1); place(u, "1")
            pad("p1", len(A.lines), 6)
            sm(0); place(u, "2")
            pad("p1", len(A.lines))
            for q in range(4):
                L.issue("ox", "ds_write_b128 v%d, %s offset:%d" % (VXW, vr(O[1] + 4 * q, 4), LA + q * 1024))
                if q == 0:
                    sm(1)
            place(u, "3")
        elif barb and not VDB:
            pv(0); place(u, "0"); pv(1); place(u, "1"); sm(0); place(u, "2"); sm(1); place(u, "3")
        else:
            sm(0); place(u, "0"); sm(1); place(u, "1")
            pos["g1"] = len(A.lines)
            pv(0); place(u, "2")
            pos["g2"] = len(A.lines)
            pv(1); place(u, "3")
        A("s_setprio 0")
        at = len(A.lines)
        if barb:
            if u == 6:
                A("s_cmp_ge_u32 s%d, %d" % (sGO, LE))
                A("s_cbranch_scc0 Lspin0")
                A.label("Lspin0_ret")
                tail.append(("spin0",))
                V.q = [("kv", 1)] * 4 + [("kv", 2)] * 4
            w = barcnt(j)
            A("s_cmp_lt_u32 s%d, 4" % sW)
            inside = u in (6, 63)
            if not inside:
                A(w)
            A("s_cbranch_scc1 Lbar_%d" % u)
            if inside:
                A(w)
            A("s_barrier")
            A.label("Lbar_%d" % u)
            late[u + 1] = w if inside else None
        if "g1" not in pos:
            pad("s1", at)
        else:
            free1 = max(6 - (pos["g1"] - pos["s1"]), 0)
            pad("s1", pos["g1"], 12, free1)
            pad("s1", pos["g2"])
        for k in range(16):
            A("v_exp_f32 v%d, v%d" % (sc + k, sc + k))
            if k == 0:
                A("s_setprio 1")
            if k >= 4:
                n0 = len(A.lines)
                place(u, "%x" % k)
                assert not (barb and len(A.lines) > n0)
    if OPT["wo"]:
        assert W0[0] > 8 * WB[0] + 6 and wdone[0] <= 8 * WJ[1] + 6 and W0[1] > 8 * WB[1] + 6 and wdone[1] < 63, wdone
    stamp(8)
    n64 = pos["p1"]
    A("v_mov_b32 v%d, 0" % E)
    A("v_mov_b32 v%d, 0" % (E + 1))
    A("v_mov_b32 v%d, %s" % (E + 2, f32(2.0 ** 100)))
    A("v_mov_b32 v%d, %s" % (E + 3, f32(2.0 ** -60)))
    Oa = O[0]
    L.drain()
    if 12 > states(n64):
        A("s_nop %d" % (12 - states(n64) - 1))
    for r in range(0, 16, 2):
        A("v_pk_add_f32 %s, %s, %s" % (vr(Oa + r, 2), vr(Oa + r, 2), vr(SO + r, 2)))
    for r in range(0, 16, 2):
        A("v_pk_fma_f32 %s, %s, 0, %s" % (vr(E, 2), vr(Oa + r, 2), vr(E, 2)))
    A("v_cmp_nle_f32 vcc, v%d, v%d" % (Oa + 12, E + 2))
    A("v_cmp_nge_f32 %s, v%d, v%d" % (sr(sT0, 2), Oa + 12, E + 3))
    A("v_cmp_u_f32 %s, v%d, v%d" % (sr(sT2, 2), E, E + 1))
    A("s_or_b64 vcc, vcc, %s" % sr(sT0, 2))
    A("s_and_b64 vcc, vcc, %s" % sr(sLOW, 2))
    A("s_or_b64 vcc, vcc, %s" % sr(sT2, 2))
    A("s_cbranch_scc1 Lfallback")
    A.label("Lepi")
    A("v_rcp_f32 v%d, v%d" % (E, Oa + 12))
    A("s_add_u32 s%d, s%d, 4096" % (sT1, sOC))
    A("v_mul_f32 v%d, v%d, v%d" % (E, E, VG))
    A("s_add_u32 s%d, s%d, 8192" % (sT2, sOC))
    A("v_mov_b32 v%d, v%d" % (E + 1, E))
    A("s_add_u32 s%d, s%d, 12288" % (sT3, sOC))
    A("s_mov_b32 s%d, 0xff" % sPEND)
    A("v_permlane32_swap_b32 v%d, v%d" % (E, E + 1))
    def ostore(sc):
        for r in range(4):
            A("v_cvt_pk_bf16_f32 v%d, v%d, v%d" % (P + r, Oa + 2 * r, Oa + 2 * r + 1))
        A("buffer_store_dwordx4 %s, v%d, s[12:15], s%d offen %s" % (vr(P, 4), VL16, sOP, sc))
        for r in range(4, 8):
            A("v_cvt_pk_bf16_f32 v%d, v%d, v%d" % (P + r, Oa + 2 * r, Oa + 2 * r + 1))
        A("v_cndmask_b32 v%d, v%d, 0, %s" % (P + 6, P + 6, sr(sLOW, 2)))
        A("v_cndmask_b32 v%d, v%d, 0, %s" % (P + 7, P + 7, sr(sLOW, 2)))
        A("s_cmp_eq_u32 s%d, 7" % sNB)
        A("buffer_store_dwordx4 %s, v%d, s[12:15], s%d offen offset:1024 %s" % (vr(P + 4, 4), VL16, sOP, sc))
    A("s_cmp_lg_u64 %s, 0" % sr(sXF, 2))
    for r in range(0, 16, 2):
        A("v_pk_mul_f32 %s, %s, %s op_sel_hi:[1,0]" % (vr(Oa + r, 2), vr(Oa + r, 2), vr(E, 2)))
    if OPT["ost"] == "dyn":
        A("s_cbranch_scc1 Ldual_o")
        tail.append(("dual", "o", ostore))
        ostore("")
        A.label("Ldual_o_ret")
    else:
        ostore(OST)
    A("s_cbranch_scc1 %s" % ("Lflag_only" if TS else Lend))
    stamp(9)
    A("s_waitcnt vmcnt(2)")
    A("v_cmp_ne_u32 %s, -1, v4" % sr(sFM, 2))
    if OPT["osync"]:
        A("s_barrier")
    osrc = [sOC, sT1, sT2, sT3]

    def oissue(tag):
        A("s_and_b32 s%d, s%d, s%d" % (sL, sFM, sPEND))
        if OPT["tsb"] == "c":
            if tag == "a":
                for r in range(1, 9):
                    A("s_mov_b32 s%d, 0" % (STS + r))
                A("s_mov_b32 m0, 0")
            A("s_memtime s[96:97]")
            A("s_waitcnt lgkmcnt(0)")
            A("s_movreld_b32 s%d, s96" % (STS + 1))
            A("s_movreld_b32 s%d, s%d" % (STS + 2, sL))
            A("s_add_u32 s96, m0, 2")
            A("s_min_u32 m0, s96, 6")
        for hl in range(8):
            A("s_bitcmp0_b32 s%d, %d" % (sL, hl))
            A("s_cbranch_scc1 Loi%s_%d" % (tag, hl))
            for e in range(2):
                A("buffer_load_dwordx4 %s, v%d, s[12:15], s%d offen offset:%d sc1" % (
                    vr(64 + 8 * hl + 4 * e, 4), VL16, osrc[hl >> 1], (hl & 1) * 2048 + e * 1024))
            A.label("Loi%s_%d" % (tag, hl))
        oprobe()

    oissue("a")
    if TS and not OPT["tsb"] and OPT.get("ocnt"):
        A("s_bcnt1_i32_b32 s%d, s%d" % (STS + 6, sL))
    A("s_mov_b64 %s, -1" % sr(sOK, 2))
    A("s_mov_b32 s%d, 0x4000" % sSPIN)
    for r in range(0, 32, 2):
        A("v_mov_b64 %s, 0" % vr(32 + r, 2))
    A("v_and_b32 v11, 31, v%d" % VLN)
    A("v_lshrrev_b32 v19, 5, v%d" % VLN)
    A("v_and_b32 v10, 7, v%d" % VLN)
    A("v_xor_b32 v19, v19, v10")
    A("v_lshlrev_b32 v19, 4, v19")
    A("v_lshl_add_u32 v11, v11, 8, v19")
    A("s_lshl_b32 s%d, s%d, 13" % (sT0, sW))
    A("s_add_u32 s%d, s%d, %d" % (sT0, sT0, LD))
    A("v_add_u32 v12, s%d, v11" % sT0)
    for q in range(1, 4):
        A("v_xor_b32 v%d, %d, v12" % (12 + q, q * 32))
    A("v_lshrrev_b32 v11, 3, v%d" % VLN)
    A("v_lshlrev_b32 v19, 1, v10")
    A("v_xor_b32 v19, v19, v11")
    A("v_lshlrev_b32 v19, 4, v19")
    A("v_lshl_add_u32 v19, v11, 8, v19")
    A("s_and_b32 s%d, s%d, 3" % (sT0, sW))
    A("s_lshl_b32 s%d, s%d, 11" % (sT0, sT0))
    A("s_lshr_b32 s%d, s%d, 2" % (sKVB, sW))
    A("s_lshl_b32 s%d, s%d, 15" % (sKVB, sKVB))
    A("s_add_u32 s%d, s%d, s%d" % (sT0, sT0, sKVB))
    A("s_add_u32 s%d, s%d, %d" % (sT0, sT0, LD))
    A("v_add_u32 v16, s%d, v19" % sT0)
    A("v_xor_b32 v17, 16, v16")
    A("v_mul_u32_u24 v11, 896, v11")
    A("v_lshl_add_u32 v18, v10, 4, v11")
    A("s_lshl_b32 s%d, s%d, 3" % (sT0, sTB))
    A("s_add_u32 s%d, s%d, s%d" % (sT0, sT0, sW))
    A("s_mul_i32 s%d, s%d, %d" % (sT0, sT0, 8 * 896))
    A("s_lshl_b32 s%d, s%d, 7" % (sKVB, sNB))
    A("s_add_u32 s%d, s%d, s%d" % (sKS, sT0, sKVB))
    A.label("Leval")
    for hl in range(8):
        A("s_bitcmp0_b32 s%d, %d" % (sL, hl))
        A("s_cbranch_scc1 Lev_%d" % hl)
        thr = [t for t in (6, 4, 2, 1, 0) if t <= 7 - hl]
        if len(thr) > 1:
            A("s_lshr_b32 s%d, s%d, %d" % (sT0, sL, hl + 1))
            A("s_bcnt1_i32_b32 s%d, s%d" % (sT0, sT0))
        for t in thr:
            A("s_waitcnt vmcnt(%d)" % (2 * t + 1))
            if t:
                A("s_cmp_ge_u32 s%d, %d" % (sT0, t))
                A("s_cbranch_scc1 Lew_%d" % hl)
        A.label("Lew_%d" % hl)
        o = 64 + 8 * hl
        A("v_max3_u32 v8, v%d, v%d, v%d" % (o, o + 1, o + 2))
        A("v_max3_u32 v9, v%d, v%d, v%d" % (o + 3, o + 4, o + 5))
        A("v_max3_u32 v8, v8, v%d, v%d" % (o + 6, o + 7))
        A("v_max_u32 v8, v8, v9")
        A("v_cmp_eq_u32 vcc, -1, v8")
        A("s_and_b64 vcc, vcc, %s" % sr(sOK, 2))
        A("s_cbranch_scc1 Lev_%d" % hl)
        for e in range(2):
            for nt in range(2):
                mf(32 + 16 * nt, 128 + ((hl * 2 + e) * 2 + nt) * 4, 64 + 8 * hl + 4 * e, vr(32 + 16 * nt, 16))
        A("s_bitset0_b32 s%d, %d" % (sPEND, hl))
        A.label("Lev_%d" % hl)
    A("s_cmp_lg_u32 s%d, 0" % sPEND)
    A("s_cbranch_scc1 Loround")
    tail.append(("oround", oissue))
    if TS and not OPT.get("rt"):
        A("s_sub_u32 s%d, 0x4000, s%d" % (STS + 10, sSPIN))
        A("s_add_u32 s%d, s%d, s%d" % (STS + 10, STS + 10, STS))
    stamp(11)
    A("s_nop 10")
    for nt in range(2):
        for q in range(4):
            L.issue("r", "ds_write_b128 v%d, %s offset:%d" % (12 + q, vr(32 + 16 * nt + 4 * q, 4), nt * 128))
    L.drain()
    A("s_barrier")
    for src in range(4):
        for e in range(2):
            L.issue(("s", src), "ds_read_b128 %s, v%d offset:%d" % (vr(64 + 8 * src + 4 * e, 4), 16 + e, src * 8192))
    for src in range(1, 4):
        L.need(("s", src))
        for r in range(0, 8, 2):
            A("v_pk_add_f32 %s, %s, %s" % (vr(64 + r, 2), vr(64 + r, 2), vr(64 + 8 * src + r, 2)))
    for r in range(4):
        A("v_cvt_pk_bf16_f32 v%d, v%d, v%d" % (24 + r, 64 + 2 * r, 65 + 2 * r))
    A("buffer_store_dwordx4 v[24:27], v18, s[28:31], s%d offen %s" % (sKS, OPT["osc"]))

    def ts_out():
        if not TS:
            return
        A("s_waitcnt vmcnt(0)")
        A("s_memtime s[96:97]")
        A("s_memrealtime s[100:101]")
        A("s_waitcnt lgkmcnt(0)")
        A("s_mov_b32 s%d, s96" % (STS + 12))
        A("s_mov_b32 s%d, s98" % (STS + 13))
        A("s_mov_b32 s%d, s100" % (STS + 14))
        A("s_getreg_b32 s%d, hwreg(HW_REG_XCC_ID)" % (STS + 15))
        if TS == "dbg":
            Ld = A.newlabel("dbg")
            A("s_not_b32 s98, s98")
            A("v_mov_b32 v32, s98")
            A("v_mov_b32 v33, s100")
            A("s_mov_b64 exec, 1")
            A("buffer_atomic_umax v32, v%d, s[32:35], 0 offen offset:8" % VFO)
            A("buffer_atomic_umax v33, v%d, s[32:35], 0 offen offset:12" % VFO)
            for r in range(1, 13):
                if r != 6:
                    A("s_sub_u32 s%d, s%d, s%d" % (STS + r, STS + r, STS))
                A("v_mov_b32 v%d, s%d" % (33 + r, STS + r))
            A("s_cmp_eq_u32 s%d, 7" % sNB)
            A("s_cbranch_scc1 %s" % Ld)
            for r in range(1, 13):
                A("buffer_atomic_umax v%d, v%d, s[32:35], 0 offen offset:%d" % (33 + r, VFO, 12 + 4 * r))
            A.label(Ld)
            return
        for r in range(16):
            A("v_mov_b32 v%d, s%d" % (32 + r, STS + r))
        A("s_lshl_b32 s64, s2, 3")
        A("s_add_u32 s64, s64, s%d" % sW)
        A("s_lshl_b32 s64, s64, 6")
        A("s_add_u32 s64, s64, %d" % WS_TS)
        A("s_mov_b64 exec, 1")
        for q in range(4):
            A("buffer_store_dwordx4 %s, v%d, s[12:15], s64 offen offset:%d" % (vr(32 + 4 * q, 4), VFO, q * 16))
    ts_out()
    A.label(Lend)
    A("s_endpgm")

    if TS:
        A.label("Lflag_only")
        stamp(9)
        ts_out()
        A("s_endpgm")

    for t in tail:
        if t[0] == "nonce":
            A.label("Lnonce_wait")
            A("s_mov_b32 s%d, 0x4000" % sSPIN)
            A.label("Lnonce_l")
            A("buffer_load_dwordx2 %s, v%d, s[32:35], 0 offen sc1" % (vr(VN, 2), VFO))
            A("s_waitcnt vmcnt(0)")
            A("v_cmp_eq_u64 vcc, 0, %s" % vr(VN, 2))
            A("s_cbranch_vccz Lnonce_ok")
            A("s_sub_u32 s%d, s%d, 1" % (sSPIN, sSPIN))
            A("s_cbranch_scc0 Lnonce_l")
            A("s_branch Lnonce_ok")
        elif t[0] == "go":
            A.label("Lgo_%d" % t[1])
            kvdma()
            if TS and not OPT["tsb"] and not OPT.get("rt"):
                A("s_mov_b32 s%d, %d" % (STS + 6, t[1]))
            A("s_cmp_ge_u32 s%d, %d" % (sGO, LE))
            A("s_cbranch_scc1 Lchk_%d" % t[1])
            A("s_and_b32 s%d, s%d, s%d" % (sT0, sFM, sPEND))
            A("s_cbranch_scc1 Lgo_%d" % t[1])
            A("s_branch Lgo_%d_ret" % t[1])
        elif t[0] == "spin0":
            A.label("Lspin0")
            A("s_mov_b32 s%d, 0x4000" % sSPIN)
            A.label("Lspin0_l")
            A("s_waitcnt vmcnt(0)")
            A("v_cmp_eq_u64 %s, %s, %s" % (sr(sFM, 2), vr(VFC, 2), vr(VN, 2)))
            A("s_and_b32 s%d, s%d, s%d" % (sT0, sFM, sPEND))
            A("s_cbranch_scc1 Lspin0_go")
            A(poll(VFC))
            A("s_sub_u32 s%d, s%d, 1" % (sSPIN, sSPIN))
            A("s_cbranch_scc0 Lspin0_l")
            A("s_mov_b32 s%d, s%d" % (sT0, sPEND))
            A.label("Lspin0_go")
            kvdma()
            if TS and not OPT["tsb"] and not OPT.get("rt"):
                A("s_mov_b32 s%d, 15" % (STS + 6))
            A("s_cmp_ge_u32 s%d, %d" % (sGO, LE))
            A("s_cbranch_scc1 Lspin0_ret")
            A("s_and_b32 s%d, s%d, s%d" % (sT0, sFM, sPEND))
            A("s_cbranch_scc1 Lspin0_go")
            A("s_branch Lspin0")
        elif t[0] == "slow":
            j = t[1]
            A.label("Lslow_%d" % j)
            A("s_mov_b32 s%d, 0x4000" % sSPIN)
            A.label("Lslow_%d_l" % j)
            A(poll(VFC))
            A("s_waitcnt vmcnt(0)")
            A("v_cmp_eq_u64 %s, %s, %s" % (sr(sFM, 2), vr(VFC, 2), vr(VN, 2)))
            A("s_and_b32 s%d, s%d, s%d" % (sT0, sFM, sPEND))
            A("s_cbranch_scc1 Lslow_%d_ret" % j)
            A("s_sub_u32 s%d, s%d, 1" % (sSPIN, sSPIN))
            A("s_cbranch_scc0 Lslow_%d_l" % j)
            A("s_mov_b32 s%d, s%d" % (sT0, sPEND))
            A("s_branch Lslow_%d_ret" % j)
        elif t[0] == "pois":
            A.label("Lpois")
            A("s_mov_b32 s%d, 0x4000" % sSPIN)
            A.label("Lpois_l")
            A(poll(VFC, sFOC, 122))
            A("s_waitcnt vmcnt(0)")
            A("v_cmp_ne_u64 vcc, %s, %s" % (vr(VFC, 2), vr(VN, 2)))
            A("s_cbranch_vccz Lpois_ret")
            A("s_sub_u32 s%d, s%d, 1" % (sSPIN, sSPIN))
            A("s_cbranch_scc0 Lpois_l")
            A("s_branch Lpois_ret")
        elif t[0] == "dual":
            A.label("Ldual_%s" % t[1])
            t[2]("sc1")
            A("s_branch Ldual_%s_ret" % t[1])
        elif t[0] == "oround":
            A.label("Loround")
            A("s_waitcnt vmcnt(0)")
            A("v_cmp_ne_u32 %s, -1, v4" % sr(sFM, 2))
            A("s_sub_u32 s%d, s%d, 1" % (sSPIN, sSPIN))
            A("s_cbranch_scc0 Loin")
            A("s_mov_b64 %s, 0" % sr(sOK, 2))
            A("s_mov_b32 s%d, 0xff" % sFM)
            A.label("Loin")
            t[1]("b")
            A("s_branch Leval")

    NM = S[1]
    A.label("Lfallback")
    A("v_cndmask_b32 v%d, v%d, 0, %s" % (QA + 6, QA + 6, sr(sLOW, 2)))
    A("v_mov_b32 v%d, 0xff800000" % E)
    A("s_lshl_b32 s%d, s%d, 18" % (sT0, sHB))
    A("s_mov_b32 s%d, 64" % sT1)
    A.label("Lfb1")
    A("buffer_load_dwordx4 %s, v%d, s[12:15], s%d offen sc1" % (vr(K0, 4), VL16, sT0))
    A("buffer_load_dwordx4 %s, v%d, s[12:15], s%d offen offset:1024 sc1" % (vr(K1, 4), VL16, sT0))
    A("s_waitcnt vmcnt(0)")
    mf(S[0], K0, QA, "0")
    mf(S[0], K1, QA + 4, vr(S[0], 16))
    A("s_nop 11")
    for r in range(0, 16, 2):
        A("v_max3_f32 v%d, v%d, v%d, v%d" % (E, E, S[0] + r, S[0] + r + 1))
    A("s_add_u32 s%d, s%d, 4096" % (sT0, sT0))
    A("s_sub_u32 s%d, s%d, 1" % (sT1, sT1))
    A("s_cmp_lg_u32 s%d, 0" % sT1)
    A("s_cbranch_scc1 Lfb1")
    A("v_mov_b32 v%d, v%d" % (E + 1, E))
    A("s_nop 1")
    A("v_permlane32_swap_b32 v%d, v%d" % (E, E + 1))
    A("s_nop 1")
    A("v_max_f32 v%d, v%d, v%d" % (E, E, E + 1))
    for r in range(16):
        A("v_sub_f32 v%d, 0, v%d" % (NM + r, E))
        A("v_mov_b32 v%d, 0" % (Oa + r))
    A("s_lshl_b32 s%d, s%d, 18" % (sT0, sHB))
    A("s_mov_b32 s%d, 64" % sT1)
    A.label("Lfb2")
    for k, reg in enumerate((K0, K1, V0, V1)):
        A("buffer_load_dwordx4 %s, v%d, s[12:15], s%d offen offset:%d sc1" % (vr(reg, 4), VL16, sT0, k * 1024))
    A("s_waitcnt vmcnt(0)")
    mf(S[0], K0, QA, vr(NM, 16))
    mf(S[0], K1, QA + 4, vr(S[0], 16))
    A("s_nop 11")
    for r in range(16):
        A("v_exp_f32 v%d, v%d" % (S[0] + r, S[0] + r))
    if SM:
        A("s_nop 1")
        smf(Oa, V0, S[0])
        smf(Oa, V1, S[0] + 8)
    else:
        A("s_nop 0")
        for r in range(8):
            A("v_cvt_pk_bf16_f32 v%d, v%d, v%d" % (P + r, S[0] + 2 * r, S[0] + 2 * r + 1))
        A("s_nop 1")
        mf(Oa, V0, P, vr(Oa, 16))
        mf(Oa, V1, P + 4, vr(Oa, 16))
    A("s_add_u32 s%d, s%d, 4096" % (sT0, sT0))
    A("s_sub_u32 s%d, s%d, 1" % (sT1, sT1))
    A("s_cmp_lg_u32 s%d, 0" % sT1)
    A("s_cbranch_scc1 Lfb2")
    A("s_nop 11")
    A("s_branch Lepi")
    A("s_endpgm")
    A.label("Lcode_end")
    return name, descriptor(name, 256, 256, 102), "grid=(256,1,1) block=(512,1,1) lds=163840"


def main(out):
    A = Asm()
    n, d, l = gen(A)
    head = ["; gated dual-branch MHA block, single fused launch: QKV projection -> attention -> output projection",
            "; @launch kernel=%s %s" % (n, l),
            '.amdgcn_target "amdgcn-amd-amdhsa--gfx950"', ".text"]
    open(out, "w").write("\n".join(head) + "\n" + A.text() + '.section .rodata,"a"\n' + d + "\n")


if __name__ == "__main__":
    for a in sys.argv[2:]:
        k, _, v = a.partition("=")
        OPT[k] = {"": True, "0": False, "1": True}.get(v, v)
    main(sys.argv[1])
```
